```python
import torch

def _softmax(x, axis=-1):
    return torch.softmax(x, dim=axis)
def _gelu(x):
    return torch.nn.functional.gelu(x, approximate="tanh")
def _silu(x):
    return torch.nn.functional.silu(x)
def _sigmoid(x):
    return torch.sigmoid(x)
def _layernorm(x, axis=-1, eps=1e-5):
    m = x.mean(dim=axis, keepdim=True)
    v = x.var(dim=axis, keepdim=True, unbiased=False)
    return (x - m) / torch.sqrt(v + eps)
def _scatter_add(tgt, idx, src, axis=0):
    return tgt.clone().index_add_(axis, idx, src)
def _segment_sum(src, seg, n):
    out = torch.zeros((n,) + src.shape[1:], dtype=src.dtype)
    return out.index_add_(0, seg, src)
def _pad(x, pw):
    flat = tuple(v for pair in reversed(pw) for v in pair)
    return torch.nn.functional.pad(x, flat)

kernel_name = 'concat_heads__mha_block_cached__gqa_block_cached__near_ridge'

def setup_inputs():

    _w = (lambda a: (lambda t: t.to(torch.bfloat16) if t.is_floating_point() else t)(torch.as_tensor(a)))
    def _A_setup():
        B, Sq, D = 16, 48, 640
        H, Sk, Dh = 32, 48, 128
        return {
            "x": _w((lambda *s: torch.randn(*s, dtype=torch.bfloat16) * 0.8)(B, Sq, D)),
            "k_cache": _w((lambda *s: torch.randn(*s, dtype=torch.bfloat16) * 0.8)(B, H, Sk, Dh)),
            "v_cache": _w((lambda *s: torch.randn(*s, dtype=torch.bfloat16) * 0.05)(B, H, Sk, Dh)),
            "wq": _w((lambda *s: torch.randn(*s, dtype=torch.bfloat16) * 0.8)(D, H * Dh) * (D ** -0.5)),
            "wo": _w((lambda *s: torch.randn(*s, dtype=torch.bfloat16) * 0.05)(H * Dh, D) * ((H * Dh) ** -0.5)),
        }
    _A_in = _A_setup()

    def _B_setup():
        B, Sq, D = 16, 48, 640
        Hq, Hkv, Sk, Dh = 32, 32, 48, 128
        assert Hq % Hkv == 0, (Hq, Hkv)
        return {
            "x": _w((lambda *s: torch.randn(*s, dtype=torch.bfloat16) * 0.8)(B, Sq, D)),
            "k_cache": _w((lambda *s: torch.randn(*s, dtype=torch.bfloat16) * 0.8)(B, Hkv, Sk, Dh)),
            "v_cache": _w((lambda *s: torch.randn(*s, dtype=torch.bfloat16) * 0.05)(B, Hkv, Sk, Dh)),
            "wq": _w((lambda *s: torch.randn(*s, dtype=torch.bfloat16) * 0.8)(D, Hq * Dh) * (D ** -0.5)),
            "wo": _w((lambda *s: torch.randn(*s, dtype=torch.bfloat16) * 0.05)(Hq * Dh, D) * ((Hq * Dh) ** -0.5)),
        }
    _B_in = _B_setup()

    return {
        "A_x": _A_in["x"],
        "A_k_cache": _A_in["k_cache"],
        "A_v_cache": _A_in["v_cache"],
        "A_wq": _A_in["wq"],
        "A_wo": _A_in["wo"],
        "B_x": _B_in["x"],
        "B_k_cache": _B_in["k_cache"],
        "B_v_cache": _B_in["v_cache"],
        "B_wq": _B_in["wq"],
        "B_wo": _B_in["wo"],
    }

def reference(A_x, A_k_cache, A_v_cache, A_wq, A_wo, B_x, B_k_cache, B_v_cache, B_wq, B_wo):
    def _A_ref(x, k_cache, v_cache, wq, wo):
        B, Sq, D = x.shape
        H, Dh = 32, 128
        q = (lambda x, *d: x.permute(*d))((x @ wq).reshape(B, Sq, H, Dh), 0, 2, 1, 3)
        scores = torch.einsum("bhqd,bhkd->bhqk", q, k_cache) * (Dh ** -0.5)
        p = _softmax(scores, axis=-1)
        o = torch.einsum("bhqk,bhkd->bhqd", p, v_cache)
        return (lambda x, *d: x.permute(*d))(o, 0, 2, 1, 3).reshape(B, Sq, H * Dh) @ wo

    def _B_ref(x, k_cache, v_cache, wq, wo):
        B, Sq, D = x.shape
        Hq, Dh = 32, 128
        Hkv = k_cache.shape[1]
        rep = Hq // Hkv
        q = (lambda x, *d: x.permute(*d))((x @ wq).reshape(B, Sq, Hq, Dh), 0, 2, 1, 3)
        k = (lambda x, n, axis: torch.repeat_interleave(x, n, dim=axis))(k_cache, rep, axis=1)
        v = (lambda x, n, axis: torch.repeat_interleave(x, n, dim=axis))(v_cache, rep, axis=1)
        scores = torch.einsum("bhqd,bhkd->bhqk", q, k) * (Dh ** -0.5)
        p = _softmax(scores, axis=-1)
        o = torch.einsum("bhqk,bhkd->bhqd", p, v)
        return (lambda x, *d: x.permute(*d))(o, 0, 2, 1, 3).reshape(B, Sq, Hq * Dh) @ wo

    a = _A_ref(A_x, A_k_cache, A_v_cache, A_wq, A_wo)
    b = _B_ref(B_x, B_k_cache, B_v_cache, B_wq, B_wo)
    return torch.concatenate([a, b], axis=-1)
```

```python
import sys

NAME = "concat_heads__mha_block_cached__gqa_block_cached__near_ridge"

class Asm:
    def __init__(self):
        self.lines = []
        self.vm = []
    def e(self, s):
        self.lines.append("    " + s)
    def label(self, s):
        self.lines.append(s + ":")
    def c(self, s):
        self.lines.append("    ; " + s)
    def vmem(self, s, tag):
        self.e(s)
        self.vm.append(tag)
    def wait_vm(self, tags):
        last = -1
        for i, t in enumerate(self.vm):
            if t in tags:
                last = i
        if last < 0:
            return
        n = len(self.vm) - 1 - last
        assert n <= 63, n
        self.e(f"s_waitcnt vmcnt({n})")
        self.vm = self.vm[last + 1:]
    def text(self):
        return "\n".join(self.lines) + "\n"

def vr(base, n=1):
    return f"v{base}" if n == 1 else f"v[{base}:{base+n-1}]"
def ar(base, n=1):
    return f"a{base}" if n == 1 else f"a[{base}:{base+n-1}]"

def gen_k1():
    A = Asm()
    e = A.e
    NS = 6
    WBASE = 49152
    ACC = 0
    F0 = 96
    F1 = 128
    TRA = 160
    TRB = 168
    VX = 176
    VWA = 179
    VWB = 180
    VK = 181
    VVA = 182
    VVB = 183
    VL16 = 184
    T0 = 186
    NV = 200
    XA = 0
    KA = 120
    NA = 168
    SX, SW, SK, SV, SO = 8, 12, 16, 20, 24
    e("s_cmp_ge_u32 s2, 256")
    e("s_cbranch_scc1 K1_done")
    e("s_and_b32 s3, s2, 7")
    e("s_lshr_b32 s4, s2, 3")
    e("s_lshr_b32 s5, s3, 2")
    e("s_mul_i32 s6, s5, 40")
    e("s_load_dwordx4 s[28:31], s[0:1], s6")
    e("s_load_dwordx4 s[32:35], s[0:1], s6 offset:16")
    e("s_load_dwordx2 s[36:37], s[0:1], 96")
    e("v_lshrrev_b32 v186, 6, v0")
    e("s_and_b32 s7, s3, 3")
    e("s_lshl_b32 s7, s7, 3")
    e("v_readfirstlane_b32 s38, v186")
    e("s_lshr_b32 s39, s4, 2")
    e("s_add_u32 s7, s7, s39")
    e("s_and_b32 s39, s4, 3")
    e("s_lshl_b32 s39, s39, 2")
    e("s_add_u32 s39, s39, s38")
    e("v_and_b32 v0, 63, v0")
    e("v_and_b32 v187, 15, v0")
    e("v_lshrrev_b32 v188, 4, v0")
    e("v_lshlrev_b32 v184, 4, v0")
    e("v_mul_u32_u24 v189, 1280, v187")
    e("v_lshlrev_b32 v190, 4, v188")
    e(f"v_add_u32 v{VX}, v189, v190")
    e(f"v_add_u32 v{VX+1}, 20480, v{VX}")
    e(f"v_add_u32 v{VX+2}, 40960, v{VX}")
    e("v_lshlrev_b32 v189, 8, v187")
    e(f"v_add_u32 v{VK}, v189, v190")
    e("v_lshrrev_b32 v189, 1, v188")
    e("v_lshlrev_b32 v189, 2, v189")
    e("v_and_b32 v190, 1, v188")
    e("v_or_b32 v189, v189, v190")
    e("v_xor_b32 v189, v189, v187")
    e("v_lshlrev_b32 v189, 4, v189")
    e("v_lshlrev_b32 v190, 13, v188")
    e(f"v_add_u32 v{VWA}, v189, v190")
    e(f"v_xor_b32 v{VWB}, 128, v{VWA}")
    e("v_lshlrev_b32 v189, 1, v188")
    e("v_xor_b32 v189, v189, v187")
    e("v_lshlrev_b32 v189, 4, v189")
    e("v_lshlrev_b32 v190, 8, v188")
    e(f"v_add_u32 v{VVA}, v189, v190")
    e(f"v_xor_b32 v{VVB}, 128, v{VVA}")
    e("v_lshrrev_b32 v191, 2, v0")
    e("v_and_b32 v191, 3, v191")
    e("v_and_b32 v192, 3, v0")
    e("v_lshlrev_b32 v189, 3, v188")
    e("v_add_u32 v189, v189, v191")
    e("v_lshlrev_b32 v189, 8, v189")
    e("v_and_b32 v190, 1, v191")
    e("v_xor_b32 v190, v190, v192")
    e("v_lshlrev_b32 v190, 4, v190")
    e("v_add_u32 v189, v189, v190")
    e("v_and_b32 v190, 1, v192")
    e("v_lshlrev_b32 v190, 3, v190")
    e("v_add_u32 v189, v189, v190")
    e(f"v_add_u32 v189, {WBASE}, v189")
    e("v_and_b32 v190, 1, v188")
    e("v_lshlrev_b32 v190, 1, v190")
    e("v_lshrrev_b32 v193, 1, v191")
    e("v_or_b32 v190, v190, v193")
    for s in range(4):
        e(f"v_xor_b32 v193, {s}, v190")
        e("v_lshlrev_b32 v193, 6, v193")
        e(f"v_add_u32 v{TRA+2*s}, v189, v193")
        e(f"v_xor_b32 v{TRA+2*s+1}, 8, v{TRA+2*s}")
    for t in range(8):
        e(f"v_add_u32 v{TRB+t}, {3*16384}, v{TRA+t}")
    e("s_waitcnt lgkmcnt(0)")
    e("s_mul_i32 s40, s39, 61440")
    e(f"s_add_u32 s{SX}, s28, s40")
    e(f"s_addc_u32 s{SX+1}, s29, 0")
    e(f"s_mov_b32 s{SX+2}, 61440")
    e(f"s_mov_b32 s{SX+3}, 0x00020000")
    e("s_lshl_b32 s40, s7, 8")
    e(f"s_add_u32 s{SW}, s34, s40")
    e(f"s_addc_u32 s{SW+1}, s35, 0")
    e(f"s_sub_u32 s{SW+2}, {640*8192}, s40")
    e(f"s_mov_b32 s{SW+3}, 0x00020000")
    e("s_lshl_b32 s40, s39, 5")
    e("s_add_u32 s40, s40, s7")
    e("s_mul_i32 s40, s40, 12288")
    e(f"s_add_u32 s{SK}, s30, s40")
    e(f"s_addc_u32 s{SK+1}, s31, 0")
    e(f"s_mov_b32 s{SK+2}, 12288")
    e(f"s_mov_b32 s{SK+3}, 0x00020000")
    e(f"s_add_u32 s{SV}, s32, s40")
    e(f"s_addc_u32 s{SV+1}, s33, 0")
    e(f"s_mov_b32 s{SV+2}, 12288")
    e(f"s_mov_b32 s{SV+3}, 0x00020000")
    e("s_mul_i32 s40, s5, 48")
    e("s_mul_i32 s41, s39, 3")
    e("s_add_u32 s40, s40, s41")
    e("s_lshl_b32 s40, s40, 7")
    e("s_lshl_b32 s41, s7, 2")
    e("s_add_u32 s40, s40, s41")
    e("s_lshl_b32 s40, s40, 10")
    e(f"s_add_u32 s{SO}, s36, s40")
    e(f"s_addc_u32 s{SO+1}, s37, 0")
    e(f"s_sub_u32 s{SO+2}, 12582912, s40")
    e(f"s_mov_b32 s{SO+3}, 0x00020000")
    e("s_lshl_b32 s42, s38, 12")
    e("s_lshl_b32 s43, s38, 17")
    e("s_mul_i32 s44, s38, 12288")
    e("s_mov_b32 s45, 4096")
    e("s_mov_b32 s46, 8192")
    e("s_mov_b32 s47, 131072")
    e("s_mov_b32 s48, 262144")

    def issue_W(i, m):
        slot = i % NS
        e(f"s_add_u32 m0, s42, {WBASE + slot*16384 + m*1024}")
        e(f"s_add_u32 s49, s43, {(i*64 + 4*m)*8192}")
        v = VWA if m < 2 else VWB
        A.vmem(f"buffer_load_dwordx4 v{v}, s[{SW}:{SW+3}], s49 offen lds", f"W{i}")
    def issue_X(i, n):
        ks, tq = n // 3, n % 3
        dst = XA + (i % 5) * 24 + (ks * 3 + tq) * 4
        A.vmem(f"buffer_load_dwordx4 {ar(dst,4)}, v{VX+tq}, s[{SX}:{SX+3}], 0 offen offset:{i*128 + ks*64}", f"X{i}")
    def issue_KV(n):
        if n < 12:
            tk, s = n // 4, n % 4
            so = ["0", "s45", "s46"][tk]
            A.vmem(f"buffer_load_dwordx4 {ar(KA + n*4,4)}, v{VK}, s[{SK}:{SK+3}], {so} offen offset:{s*64}", "K")
        else:
            jj = n - 12
            q, m = jj // 4, jj % 4
            so = ["0", "s45", "s46"][q]
            e(f"s_add_u32 m0, s44, {q*4096}")
            e("s_nop 0")
            v = VVA if (jj % 2 == 0) else VVB
            A.vmem(f"buffer_load_dwordx4 v{v}, s[{SV}:{SV+3}], {so} offen offset:{m*1024} lds", "V")

    for r in range(96):
        e(f"v_mov_b32 v{ACC+r}, 0")
    for i in range(4):
        for m in range(4): issue_W(i, m)
        for n in range(6): issue_X(i, n)
    for m in range(4): issue_W(4, m)
    kvn = 0
    for n in range(6):
        issue_KV(kvn); kvn += 1

    def tr_read(i, ks, t, hh, F):
        slot = i % NS
        base = TRA if slot < 3 else TRB
        off = (slot % 3) * 16384 + (32 * ks + 4 * hh) * 256
        e(f"ds_read_b64_tr_b16 {vr(F + t*4 + hh*2, 2)}, v{base+t} offset:{off}")
    def mfma_q(i, ks, t, F):
        for tq in range(3):
            a = ACC + (t * 3 + tq) * 4
            x = XA + (i % 5) * 24 + (ks * 3 + tq) * 4
            e(f"v_mfma_f32_16x16x32_bf16 {vr(a,4)}, {vr(F+t*4,4)}, {ar(x,4)}, {vr(a,4)}")

    for i in range(10):
        A.c(f"---- iteration {i}")
        A.wait_vm({f"W{i}", f"X{i}"})
        e("s_barrier")
        vq = []
        if i + 5 < 10:
            vq += [("W", i + 5, m) for m in range(4)]
        for _ in range(3):
            if kvn < 24:
                vq.append(("KV", kvn, 0)); kvn += 1
        for t in range(8):
            if i > 0:
                if t > 0:
                    e("s_waitcnt lgkmcnt(14)")
                mfma_q(i - 1, 1, t, F1)
            tr_read(i, 0, t, 0, F0)
            tr_read(i, 0, t, 1, F0)
            if vq:
                k = vq.pop(0)
                if k[0] == "W": issue_W(k[1], k[2])
                else: issue_KV(k[1])
        while vq:
            k = vq.pop(0)
            if k[0] == "W": issue_W(k[1], k[2])
            else: issue_KV(k[1])
        xq = [n for n in range(6)] if i + 4 < 10 else []
        for t in range(8):
            e("s_waitcnt lgkmcnt(14)")
            mfma_q(i, 0, t, F0)
            tr_read(i, 1, t, 0, F1)
            tr_read(i, 1, t, 1, F1)
            if xq:
                issue_X(i + 4, xq.pop(0))
        e("s_waitcnt lgkmcnt(0)")
    for t in range(8):
        mfma_q(9, 1, t, F1)
    e("v_lshlrev_b32 v189, 2, v188")
    e("v_add_u32 v189, v189, v191")
    e("v_and_b32 v190, 7, v189")
    e("v_lshlrev_b32 v189, 8, v189")
    e("v_lshrrev_b32 v193, 1, v192")
    e("v_lshlrev_b32 v193, 4, v193")
    e("v_add_u32 v189, v189, v193")
    e("v_and_b32 v193, 1, v192")
    e("v_lshlrev_b32 v193, 3, v193")
    e("v_add_u32 v189, v189, v193")
    e("v_add_u32 v189, s44, v189")
    for t in range(8):
        e(f"v_xor_b32 v193, {t}, v190")
        e("v_lshlrev_b32 v193, 5, v193")
        e(f"v_add_u32 v{TRA+t}, v189, v193")
    e("s_mov_b32 s50, 0xffff0000")
    e("s_mov_b32 s51, 0xffff0000")
    QP = F0
    e("s_nop 7")
    for tq in range(3):
        for s in range(4):
            d = QP + (tq * 4 + s) * 4
            for u in range(2):
                a = ACC + ((2 * s + u) * 3 + tq) * 4
                e(f"v_cvt_pk_bf16_f32 v{d+2*u}, v{a}, v{a+1}")
                e(f"v_cvt_pk_bf16_f32 v{d+2*u+1}, v{a+2}, v{a+3}")
    e("s_mov_b64 exec, s[50:51]")
    for f in range(12):
        d = QP + f * 4
        e(f"v_swap_b32 v{d}, v{d+2}")
        e(f"v_swap_b32 v{d+1}, v{d+3}")
    e("s_mov_b64 exec, -1")
    A.wait_vm({"K"})
    e("s_nop 3")
    ST = ACC
    for tq in range(3):
        for tk in range(3):
            d = ST + (tq * 3 + tk) * 4
            for s in range(4):
                c = "0" if s == 0 else vr(d, 4)
                e(f"v_mfma_f32_16x16x32_bf16 {vr(d,4)}, {ar(KA+(tk*4+s)*4,4)}, {vr(QP+(tq*4+s)*4,4)}, {c}")
    PP = 40
    e("s_mov_b32 s52, 0x3e0293ee")
    e("s_nop 7")
    for tq in range(3):
        b = ST + tq * 12
        m = 60 + tq * 4; m2 = m + 1; sm = m + 2; sm2 = m + 3
        e(f"v_max3_f32 v{m}, v{b}, v{b+1}, v{b+2}")
        e(f"v_max3_f32 v{m2}, v{b+3}, v{b+4}, v{b+5}")
        e(f"v_max3_f32 v{m}, v{m}, v{b+6}, v{b+7}")
        e(f"v_max3_f32 v{m2}, v{m2}, v{b+8}, v{b+9}")
        e(f"v_max3_f32 v{m}, v{m}, v{b+10}, v{b+11}")
        e(f"v_max_f32 v{m}, v{m}, v{m2}")
        e(f"v_mov_b32 v{m2}, v{m}")
        e("s_nop 1")
        e(f"v_permlane16_swap_b32 v{m}, v{m2}")
        e(f"v_max_f32 v{m}, v{m}, v{m2}")
        e(f"v_mov_b32 v{m2}, v{m}")
        e("s_nop 1")
        e(f"v_permlane32_swap_b32 v{m}, v{m2}")
        e(f"v_max_f32 v{m}, v{m}, v{m2}")
        e(f"v_mul_f32 v{m}, s52, v{m}")
        for r in range(12):
            e(f"v_fma_f32 v{b+r}, v{b+r}, s52, -v{m}")
        for r in range(12):
            e(f"v_exp_f32 v{b+r}, v{b+r}")
        e("s_nop 0")
        e(f"v_add_f32 v{sm}, v{b}, v{b+1}")
        e(f"v_add_f32 v{sm2}, v{b+2}, v{b+3}")
        for r in range(4, 12, 2):
            e(f"v_add_f32 v{sm}, v{sm}, v{b+r}")
            e(f"v_add_f32 v{sm2}, v{sm2}, v{b+r+1}")
        e(f"v_add_f32 v{sm}, v{sm}, v{sm2}")
        e(f"v_mov_b32 v{sm2}, v{sm}")
        e("s_nop 1")
        e(f"v_permlane16_swap_b32 v{sm}, v{sm2}")
        e(f"v_add_f32 v{sm}, v{sm}, v{sm2}")
        e(f"v_mov_b32 v{sm2}, v{sm}")
        e("s_nop 1")
        e(f"v_permlane32_swap_b32 v{sm}, v{sm2}")
        e(f"v_add_f32 v{sm}, v{sm}, v{sm2}")
        e(f"v_rcp_f32 v{sm}, v{sm}")
        e("s_nop 0")
        for r in range(12):
            e(f"v_mul_f32 v{b+r}, v{b+r}, v{sm}")
        for k in range(6):
            e(f"v_cvt_pk_bf16_f32 v{PP+tq*6+k}, v{b+2*k}, v{b+2*k+1}")
    A.wait_vm({"V"})
    VF = 72
    def v_reads(t, buf):
        for tk in range(3):
            e(f"ds_read_b64_tr_b16 {vr(VF+buf*6+tk*2,2)}, v{TRA+t} offset:{tk*4096}")
    v_reads(0, 0)
    for t in range(9):
        if t + 1 < 8:
            v_reads(t + 1, (t + 1) % 3)
            e("s_waitcnt lgkmcnt(3)")
        elif t < 8:
            e("s_waitcnt lgkmcnt(0)")
        if t < 8:
            f = VF + (t % 3) * 6
            for tq in range(3):
                o = (t * 3 + tq) * 4
                e(f"v_mfma_f32_16x16x32_bf16 {ar(o,4)}, {vr(f,4)}, {vr(PP+tq*6,4)}, 0")
        else:
            e("s_nop 5")
        if t > 0:
            f = VF + ((t - 1) % 3) * 6
            for tq in range(3):
                o = ((t - 1) * 3 + tq) * 4
                e(f"v_mfma_f32_16x16x16_bf16 {ar(o,4)}, {vr(f+4,2)}, {vr(PP+tq*6+4,2)}, {ar(o,4)}")
    e("s_nop 7")
    OB = 96
    for tq in range(3):
        so = ["0", "s47", "s48"][tq]
        for s in range(4):
            d = OB + (tq * 4 + s) * 4
            tmp = 144
            for u in range(2):
                o = ((2 * s + u) * 3 + tq) * 4
                for r in range(4):
                    e(f"v_accvgpr_read_b32 v{tmp+u*4+r}, a{o+r}")
            for u in range(2):
                e(f"v_cvt_pk_bf16_f32 v{d+2*u}, v{tmp+u*4}, v{tmp+u*4+1}")
                e(f"v_cvt_pk_bf16_f32 v{d+2*u+1}, v{tmp+u*4+2}, v{tmp+u*4+3}")
            A.vmem(f"buffer_store_dwordx4 {vr(d,4)}, v{VL16}, s[{SO}:{SO+3}], {so} offen offset:{s*1024}", "O")
    A.label("K1_done")
    e("s_endpgm")
    return A.text(), NV, NA

def gen_k2():
    A = Asm()
    e = A.e
    D = 3
    NSL = 4
    ACC = 0
    BF = 64
    AF = 128
    TR = 144
    VB = 148
    VA = 149
    NV = 168
    SB, SA, SO = 8, 12, 16
    e("s_cmp_ge_u32 s2, 240")
    e("s_cbranch_scc1 K2_done")
    e("s_and_b32 s3, s2, 7")
    e("s_lshr_b32 s4, s2, 3")
    e("s_lshr_b32 s5, s3, 2")
    e("s_mul_i32 s6, s5, 40")
    e("s_load_dwordx2 s[28:29], s[0:1], s6 offset:32")
    e("s_load_dwordx2 s[30:31], s[0:1], 80")
    e("s_load_dwordx2 s[32:33], s[0:1], 96")
    e("v_lshrrev_b32 v150, 6, v0")
    e("s_mul_i32 s7, s4, 52")
    e("s_lshr_b32 s7, s7, 8")
    e("v_readfirstlane_b32 s38, v150")
    e("s_mul_i32 s34, s7, 5")
    e("s_sub_u32 s34, s4, s34")
    e("s_bfe_u32 s35, s3, 0x10001")
    e("s_mul_i32 s35, s35, 6")
    e("s_add_u32 s7, s7, s35")
    e("s_and_b32 s35, s3, 1")
    e("s_mul_i32 s35, s35, 5")
    e("s_add_u32 s34, s34, s35")
    e("v_and_b32 v0, 63, v0")
    e(f"v_lshlrev_b32 v{VB}, 4, v0")
    e("v_lshrrev_b32 v150, 4, v0")
    e("v_lshlrev_b32 v151, 1, v150")
    e("v_and_b32 v152, 7, v0")
    e("v_xor_b32 v151, v151, v152")
    e("v_lshlrev_b32 v151, 4, v151")
    e("v_lshrrev_b32 v152, 3, v0")
    e("v_mul_u32_u24 v152, 1280, v152")
    e(f"v_add_u32 v{VA}, v151, v152")
    e("v_lshrrev_b32 v151, 2, v0")
    e("v_lshrrev_b32 v152, 1, v151")
    e("v_and_b32 v152, 3, v152")
    e("v_lshlrev_b32 v151, 7, v151")
    e("v_and_b32 v153, 3, v0")
    e("v_lshrrev_b32 v154, 1, v153")
    e("v_lshlrev_b32 v154, 4, v154")
    e("v_add_u32 v151, v151, v154")
    e("v_and_b32 v154, 1, v153")
    e("v_lshlrev_b32 v154, 3, v154")
    e("v_add_u32 v151, v151, v154")
    e("s_lshl_b32 s39, s38, 14")
    e("v_add_u32 v151, s39, v151")
    for tn in range(4):
        e(f"v_xor_b32 v154, {tn}, v152")
        e("v_lshlrev_b32 v154, 5, v154")
        e(f"v_add_u32 v{TR+tn}, v151, v154")
    e("s_waitcnt lgkmcnt(0)")
    e("s_mul_i32 s40, s5, 48")
    e("s_lshl_b32 s41, s7, 2")
    e("s_add_u32 s40, s40, s41")
    e("s_lshl_b32 s40, s40, 7")
    e("s_lshl_b32 s41, s38, 4")
    e("s_add_u32 s40, s40, s41")
    e("s_lshl_b32 s40, s40, 10")
    e(f"s_add_u32 s{SB}, s32, s40")
    e(f"s_addc_u32 s{SB+1}, s33, 0")
    e(f"s_sub_u32 s{SB+2}, 12582912, s40")
    e(f"s_mov_b32 s{SB+3}, 0x00020000")
    e("s_mul_i32 s40, s38, 655360")
    e("s_lshl_b32 s41, s34, 7")
    e("s_add_u32 s40, s40, s41")
    e(f"s_add_u32 s{SA}, s28, s40")
    e(f"s_addc_u32 s{SA+1}, s29, 0")
    e(f"s_sub_u32 s{SA+2}, 5242880, s40")
    e(f"s_mov_b32 s{SA+3}, 0x00020000")
    e("s_mul_i32 s40, s7, 163840")
    e("s_mul_i32 s41, s5, 1280")
    e("s_add_u32 s40, s40, s41")
    e("s_lshl_b32 s41, s34, 7")
    e("s_add_u32 s40, s40, s41")
    e(f"s_add_u32 s{SO}, s30, s40")
    e(f"s_addc_u32 s{SO+1}, s31, 0")
    e(f"s_sub_u32 s{SO+2}, 1966080, s40")
    e(f"s_mov_b32 s{SO+3}, 0x00020000")

    def issue_A(n, jj):
        slot = n % NSL
        e(f"s_add_u32 m0, s39, {slot*4096 + jj*1024}")
        e(f"s_mov_b32 s44, {(32*n + 8*jj)*1280}")
        A.vmem(f"buffer_load_dwordx4 v{VA}, s[{SA}:{SA+3}], s44 offen lds", f"A{n}")
    def issue_B(n, tt):
        slot = n % NSL
        e(f"s_mov_b32 s45, {tt*131072 + n*1024}")
        A.vmem(f"buffer_load_dwordx4 {vr(BF+slot*16+tt*4,4)}, v{VB}, s[{SB}:{SB+3}], s45 offen", f"B{n}")
    for n in range(D):
        for jj in range(4): issue_A(n, jj)
        for tt in range(4): issue_B(n, tt)
    for n in range(16):
        A.c(f"---- step {n}")
        A.wait_vm({f"A{n}", f"B{n}"})
        slot = n % NSL
        for tn in range(4):
            for hh in range(2):
                e(f"ds_read_b64_tr_b16 {vr(AF+tn*4+hh*2,2)}, v{TR+tn} offset:{slot*4096 + hh*2048}")
        q = []
        if n + D < 16:
            q = [("A", jj) for jj in range(4)] + [("B", tt) for tt in range(4)]
        for tn in range(4):
            e(f"s_waitcnt lgkmcnt({6-2*tn})")
            for tt in range(4):
                a = ACC + (tn * 4 + tt) * 4
                c = "0" if n == 0 else vr(a, 4)
                e(f"v_mfma_f32_16x16x32_bf16 {vr(a,4)}, {vr(AF+tn*4,4)}, {vr(BF+slot*16+tt*4,4)}, {c}")
                if q and tt % 2 == 1:
                    k = q.pop(0)
                    if k[0] == "A": issue_A(n + D, k[1])
                    else: issue_B(n + D, k[1])
    e("s_nop 7")
    e(f"v_add_u32 v150, s39, v{VB}")
    for t in range(16):
        e(f"ds_write_b128 v150, {vr(ACC+t*4,4)} offset:{t*1024}")
    e("s_waitcnt lgkmcnt(0)")
    e("s_barrier")
    e("s_lshl_b32 s40, s38, 11")
    e(f"v_add_u32 v150, s40, v{VB}")
    e(f"v_add_u32 v151, 65536, v150")
    for p in range(2):
        for ww in range(8):
            base = "v150" if ww < 4 else "v151"
            e(f"ds_read_b128 {vr(BF+(p*8+ww)*4,4)}, {base} offset:{(ww%4)*16384 + p*1024}")
    e(f"v_bfe_u32 v152, v{VB}, 4, 4")
    e("v_mul_u32_u24 v152, 2560, v152")
    e(f"v_lshrrev_b32 v153, 8, v{VB}")
    e("v_lshlrev_b32 v153, 3, v153")
    e("v_add_u32 v152, v152, v153")
    e("s_lshr_b32 s40, s38, 1")
    e("s_lshl_b32 s40, s40, 5")
    e("s_and_b32 s41, s38, 1")
    e("s_mul_i32 s41, s41, 81920")
    e("s_add_u32 s40, s40, s41")
    e("s_add_u32 s41, s40, 40960")
    for p in range(2):
        e(f"s_waitcnt lgkmcnt({8-8*p})")
        b = BF + p * 32
        for ww in range(1, 8):
            for r in range(4):
                e(f"v_add_f32 v{b+r}, v{b+r}, v{b+ww*4+r}")
        e(f"v_cvt_pk_bf16_f32 v{154+2*p}, v{b}, v{b+1}")
        e(f"v_cvt_pk_bf16_f32 v{155+2*p}, v{b+2}, v{b+3}")
        e(f"buffer_store_dwordx2 {vr(154+2*p,2)}, v152, s[{SO}:{SO+3}], s{40+p} offen")
    A.label("K2_done")
    e("s_endpgm")
    return A.text(), NV, 0

def kd(name, nv, na):
    acc = (nv + 3) // 4 * 4
    total = acc + na if na else nv
    return f""".amdhsa_kernel {name}
  .amdhsa_next_free_vgpr {total}
  .amdhsa_next_free_sgpr 64
  .amdhsa_accum_offset {acc}
  .amdhsa_group_segment_fixed_size 0
  .amdhsa_kernarg_size 104
  .amdhsa_user_sgpr_count 2
  .amdhsa_user_sgpr_kernarg_segment_ptr 1
  .amdhsa_system_sgpr_workgroup_id_x 1
.end_amdhsa_kernel
"""

def main():
    k1, nv1, na1 = gen_k1()
    k2, nv2, na2 = gen_k2()
    out = []
    out.append("; @launch kernel=qattn_kernel grid=(256,1,1) block=(256,1,1) lds=147456")
    out.append("; @launch kernel=oproj_kernel grid=(240,1,1) block=(512,1,1) lds=131072")
    out.append('.amdgcn_target "amdgcn-amd-amdhsa--gfx950"')
    out.append(".text")
    for name, body in (("qattn_kernel", k1), ("oproj_kernel", k2)):
        out.append(f".globl {name}")
        out.append(".p2align 8")
        out.append(f".type {name},@function")
        out.append(f"{name}:")
        out.append(body)
    out.append('.section .rodata,"a"')
    out.append(".p2align 6")
    out.append(kd("qattn_kernel", nv1, na1))
    out.append(".p2align 6")
    out.append(kd("oproj_kernel", nv2, na2))
    path = sys.argv[1] if len(sys.argv) > 1 else f"cdna_kernels/{NAME}.s"
    open(path, "w").write("\n".join(out))

main()
```

```python
import sys, os
DIAG = int(os.environ.get("DIAG", "0"))
EXP = os.environ.get("EXP", "").split(",")
OPT = os.environ.get("OPT", "").split(",")
NAME = "concat_heads__mha_block_cached__gqa_block_cached__near_ridge"
def env(k, d): return int(os.environ.get(k, str(d)))

class Asm:
    def __init__(self):
        self.lines = []; self.vm = []; self.nst = 0
    def e(self, s): self.lines.append("    " + s)
    def label(self, s): self.lines.append(s + ":")
    def c(self, s): self.lines.append("    ; " + s)
    def vmem(self, s, tag):
        self.e(s); self.vm.append(tag)
    def wait_vm(self, tags):
        last = -1
        for i, t in enumerate(self.vm):
            if t in tags: last = i
        if last < 0: return
        n = len(self.vm) - 1 - last
        assert n <= 63, n
        self.e(f"s_waitcnt vmcnt({n})")
        self.vm = self.vm[last + 1:]
    def stamp(self):
        if not DIAG: return
        n = self.nst; self.nst += 1
        assert n < 32
        self.e("s_memtime s[98:99]")
        self.e("s_waitcnt lgkmcnt(0)")
        self.e(f"v_writelane_b32 v135, s98, {n}")
    def text(self): return "\n".join(self.lines) + "\n"

def vr(b, n=1): return f"v{b}" if n == 1 else f"v[{b}:{b+n-1}]"
def ar(b, n=1): return f"a{b}" if n == 1 else f"a[{b}:{b+n-1}]"

OBYTES = 12582912
PBASE = 0x1000000
F1BASE = 0xF00000
F2BASE = 0xF10000

def gen():
    A = Asm(); e = A.e
    NS, NIT, PD = 5, 20, 4
    SLOT = 8192
    XBASE = 49152; XSLOT = 24576
    RBASE = XBASE + 3 * XSLOT
    VB = [XBASE + 1 * XSLOT, XBASE + 2 * XSLOT, RBASE]
    ACC = 0
    TRA = 96; VXR = 104; VKR = 106; VL16 = 107
    VI, VG, VR, VC = 108, 109, 110, 111
    T0, T1, T2 = 112, 113, 114
    VN = 116
    NV = 136; NA = 88
    F = [0, 32]; XF = [64, 76]
    SX, SW, SK, SV, SO = 8, 12, 16, 20, 24
    SA, SB, SP, SF, SOUT, SD, ST = 64, 68, 72, 76, 80, 84, 88
    NSL, PD2, NIT2 = 4, 3, 16
    ASLOT = 16384; BBASE = 65536
    e("s_cmp_ge_u32 s2, 256")
    e("s_cbranch_scc1 L_done")
    A.stamp()
    e("s_and_b32 s3, s2, 7")
    e("s_lshr_b32 s4, s2, 3")
    e("s_lshr_b32 s5, s3, 2")
    e("s_mul_i32 s6, s5, 40")
    e("s_load_dwordx4 s[28:31], s[0:1], s6")
    e("s_load_dwordx4 s[32:35], s[0:1], s6 offset:16")
    e("s_load_dwordx2 s[56:57], s[0:1], s6 offset:32")
    e("s_load_dwordx4 s[92:95], s[0:1], 80")
    e("s_load_dwordx2 s[36:37], s[0:1], 96")
    e(f"v_lshrrev_b32 v{T0}, 6, v0")
    e("s_and_b32 s7, s3, 3")
    e("s_lshl_b32 s7, s7, 3")
    e(f"v_readfirstlane_b32 s55, v{T0}")
    e("s_lshr_b32 s39, s4, 2")
    e("s_add_u32 s7, s7, s39")
    e("s_and_b32 s38, s55, 3")
    e("s_and_b32 s39, s4, 3")
    e("s_lshl_b32 s39, s39, 2")
    e("v_and_b32 v0, 63, v0")
    e(f"v_and_b32 v{VI}, 15, v0")
    e(f"v_lshrrev_b32 v{VG}, 4, v0")
    e(f"v_lshlrev_b32 v{VL16}, 4, v0")
    e(f"v_bfe_u32 v{VR}, v0, 2, 2")
    e(f"v_and_b32 v{VC}, 3, v0")
    e("s_waitcnt lgkmcnt(0)")
    e("s_mul_i32 s40, s39, 61440")
    e(f"s_add_u32 s{SX}, s28, s40")
    e(f"s_addc_u32 s{SX+1}, s29, 0")
    e(f"s_mov_b32 s{SX+2}, 245760")
    e(f"s_mov_b32 s{SX+3}, 0x00020000")
    e("s_lshl_b32 s40, s7, 8")
    e(f"s_add_u32 s{SW}, s34, s40")
    e(f"s_addc_u32 s{SW+1}, s35, 0")
    e(f"s_sub_u32 s{SW+2}, {640*8192}, s40")
    e(f"s_mov_b32 s{SW+3}, 0x00020000")
    e("s_cmp_lt_u32 s55, 4")
    e("s_cbranch_scc1 L_srd_rest")
    e("s_cmp_lt_u32 s55, 6")
    e("s_cbranch_scc1 L_wx")
    A.label("L_srd_rest")
    e("s_lshl_b32 s40, s39, 5")
    e("s_add_u32 s40, s40, s7")
    e("s_mul_i32 s40, s40, 12288")
    e(f"s_add_u32 s{SK}, s30, s40")
    e(f"s_addc_u32 s{SK+1}, s31, 0")
    e(f"s_mov_b32 s{SK+2}, {3*393216 + 12288}")
    e(f"s_mov_b32 s{SK+3}, 0x00020000")
    e(f"s_add_u32 s{SV}, s32, s40")
    e(f"s_addc_u32 s{SV+1}, s33, 0")
    e(f"s_mov_b32 s{SV+2}, {3*393216 + 12288}")
    e(f"s_mov_b32 s{SV+3}, 0x00020000")
    e(f"s_mov_b32 s{SD}, s94")
    e(f"s_mov_b32 s{SD+1}, s95")
    e(f"s_mov_b32 s{SD+2}, 256")
    e(f"s_mov_b32 s{SD+3}, 0x00020000")
    e("s_cmp_lt_u32 s55, 4")
    e("s_cbranch_scc1 L_compute")
    e("s_branch L_kv")

    def phase2_srds(e):
        e("s_mul_i32 s60, s4, 52")
        e("s_lshr_b32 s60, s60, 8")
        e("s_mul_i32 s61, s60, 5")
        e("s_sub_u32 s61, s4, s61")
        e("s_and_b32 s62, s3, 3")
        e(f"s_add_u32 s{SF}, s36, {F1BASE}")
        e(f"s_addc_u32 s{SF+1}, s37, 0")
        e(f"s_mov_b32 s{SF+2}, 0x20000")
        e(f"s_mov_b32 s{SF+3}, 0x00020000")
    def get_nonce(e, lbl):
        e(f"v_mov_b32 v{T0}, 0")
        e("s_mov_b32 s45, 0")
        A_label = f"L_nonce_{lbl}"
        e(f"{A_label}:")
        e(f"buffer_load_dwordx2 v[{VN}:{VN+1}], v{T0}, s[{SD}:{SD+3}], 0 offen sc0 sc1")
        e("s_add_u32 s45, s45, 1")
        e("s_waitcnt vmcnt(0)")
        e(f"v_readfirstlane_b32 s44, v{VN}")
        e("s_cmp_ge_u32 s45, 0x100000")
        e(f"s_cbranch_scc1 {A_label}_d")
        e("s_cmp_eq_u32 s44, 0")
        e(f"s_cbranch_scc1 {A_label}")
        e(f"{A_label}_d:")

    def phase2_loader(L, tag):
        e = L.e
        VAD, VAD2 = 1, 2
        phase2_srds(e)
        e("s_cmp_lt_u32 s4, 30")
        e("s_cbranch_scc1 L_p2go")
        e("s_barrier")
        e("s_cmp_lg_u32 s38, 0")
        e("s_cbranch_scc1 L_done")
        e("s_lshl_b32 s40, s3, 13")
        e("s_lshl_b32 s41, s4, 3")
        e("v_lshlrev_b32 v8, 8, v0")
        e("v_add_u32 v8, s41, v8")
        e("s_mov_b32 exec_hi, 0")
        e(f"buffer_store_dwordx2 v[{VN}:{VN+1}], v8, s[{SF}:{SF+3}], s40 offen sc0 sc1")
        e("s_endpgm")
        e("L_p2go:")
        e("s_mul_i32 s40, s62, 1310720")
        e("s_lshl_b32 s41, s61, 8")
        e("s_add_u32 s40, s40, s41")
        e(f"s_add_u32 s{SA}, s56, s40")
        e(f"s_addc_u32 s{SA+1}, s57, 0")
        e(f"s_sub_u32 s{SA+2}, 5242880, s40")
        e(f"s_mov_b32 s{SA+3}, 0x00020000")
        e("s_mul_i32 s40, s3, 48")
        e("s_lshl_b32 s41, s60, 3")
        e("s_add_u32 s40, s40, s41")
        e("s_lshl_b32 s40, s40, 15")
        e(f"s_add_u32 s{SB}, s36, s40")
        e(f"s_addc_u32 s{SB+1}, s37, 0")
        e(f"s_sub_u32 s{SB+2}, {OBYTES}, s40")
        e(f"s_mov_b32 s{SB+3}, 0x00020000")
        e(f"v_lshlrev_b32 v{T0}, 1, v{VG}")
        e(f"v_xor_b32 v{T0}, v{T0}, v{VI}")
        e(f"v_lshlrev_b32 v{T0}, 4, v{T0}")
        e(f"v_mul_u32_u24 v{T1}, 1280, v{VG}")
        e(f"v_add_u32 v{VAD}, v{T0}, v{T1}")
        e(f"v_xor_b32 v{VAD2}, 128, v{VAD}")
        e("s_lshl_b32 s42, s38, 12")
        e("s_mul_i32 s43, s38, 20480")
        e("s_lshl_b32 s46, s38, 16")
        def issueA(i):
            for n in range(4):
                e(f"s_add_u32 m0, s42, {(i % NSL)*ASLOT + n*1024}")
                e(f"s_add_u32 s47, s43, {(64*i + 4*n)*1280}")
                v = VAD if n % 2 == 0 else VAD2
                L.vmem(f"buffer_load_dwordx4 v{v}, s[{SA}:{SA+3}], s47 offen lds", f"S{i}")
        def issueB(i):
            for m in (0, 2, 1, 3):
                e(f"s_add_u32 m0, s42, {BBASE + (i % NSL)*ASLOT + m*1024}")
                e(f"s_add_u32 s47, s46, {(m >> 1)*32768 + (2*i + (m & 1))*1024}")
                L.vmem(f"buffer_load_dwordx4 v{VL16}, s[{SB}:{SB+3}], s47 offen sc1 lds", f"S{i}")
        for i in range(PD2): issueA(i)
        e("s_barrier")
        e("s_cmp_lg_u32 s38, 0")
        e(f"s_cbranch_scc1 L_p1poll_{tag}_d")
        e("s_lshl_b32 s40, s3, 13")
        e("s_lshl_b32 s41, s4, 3")
        e("v_lshlrev_b32 v8, 8, v0")
        e("v_add_u32 v8, s41, v8")
        e("v_lshlrev_b32 v9, 3, v0")
        e("s_mov_b32 exec_hi, 0")
        e(f"buffer_store_dwordx2 v[{VN}:{VN+1}], v8, s[{SF}:{SF+3}], s40 offen sc0 sc1")
        e("s_lshl_b32 s41, s4, 8")
        e("s_add_u32 s40, s40, s41")
        e("s_mov_b32 s45, 0")
        e(f"L_p1poll_{tag}:")
        e(f"buffer_load_dwordx2 v[4:5], v9, s[{SF}:{SF+3}], s40 offen sc0 sc1")
        e("s_add_u32 s45, s45, 1")
        e("s_waitcnt vmcnt(0)")
        e(f"v_cmp_eq_u64 vcc, v[4:5], v[{VN}:{VN+1}]")
        e("s_cmp_ge_u32 s45, 0x100000")
        e(f"s_cbranch_scc1 L_p1poll_{tag}_x")
        e("s_cmp_eq_u32 vcc_lo, -1")
        e(f"s_cbranch_scc1 L_p1poll_{tag}_x")
        e(f"s_sleep {env('SLP', 2)}")
        e(f"s_branch L_p1poll_{tag}")
        e(f"L_p1poll_{tag}_x:")
        e("s_mov_b64 exec, -1")
        e(f"L_p1poll_{tag}_d:")
        e("s_waitcnt vmcnt(0)")
        e("s_barrier")
        L.vm = []
        for i in range(PD2): issueB(i)
        for i in range(NIT2):
            L.wait_vm({f"S{i}"})
            e("s_barrier")
            if i + PD2 < NIT2:
                issueA(i + PD2); issueB(i + PD2)
        e("s_endpgm")

    A.label("L_wx")
    L = Asm(); e = L.e
    VXD, VXD2, VWD, VWD2 = 1, 2, 3, 4
    e("s_lshl_b32 s42, s38, 12")
    e("s_mul_i32 s43, s38, 12288")
    e(f"v_and_b32 v{T0}, 7, v0")
    e(f"v_xor_b32 v{T0}, v{T0}, v{VG}")
    e(f"v_lshlrev_b32 v{T0}, 4, v{T0}")
    e(f"v_lshrrev_b32 v{T1}, 3, v0")
    e(f"v_mul_u32_u24 v{T1}, 1280, v{T1}")
    e(f"v_add_u32 v{VXD}, v{T0}, v{T1}")
    e("s_mul_i32 s40, s38, 122880")
    e(f"v_add_u32 v{VXD}, s40, v{VXD}")
    e(f"v_xor_b32 v{VXD2}, 64, v{VXD}")
    e(f"v_lshrrev_b32 v{T0}, 1, v{VG}")
    e(f"v_lshlrev_b32 v{T0}, 2, v{T0}")
    e(f"v_and_b32 v{T1}, 1, v{VG}")
    e(f"v_or_b32 v{T0}, v{T0}, v{T1}")
    e(f"v_xor_b32 v{T0}, v{T0}, v{VI}")
    e(f"v_lshlrev_b32 v{T0}, 4, v{T0}")
    e(f"v_lshlrev_b32 v{T1}, 13, v{VG}")
    e(f"v_add_u32 v{VWD}, v{T0}, v{T1}")
    e("s_lshl_b32 s40, s38, 17")
    e(f"v_add_u32 v{VWD}, s40, v{VWD}")
    e(f"v_xor_b32 v{VWD2}, 128, v{VWD}")
    RA = env("RA", 3); RB = env("RB", 1)
    e("s_and_b32 s50, s4, 3")
    e(f"s_mul_i32 s50, s50, {RA}")
    e("s_lshr_b32 s51, s4, 2")
    e(f"s_mul_i32 s51, s51, {RB}")
    e("s_add_u32 s50, s50, s51")
    e("s_mul_i32 s51, s50, 205")
    e("s_lshr_b32 s51, s51, 11")
    e("s_mul_i32 s51, s51, 10")
    e("s_sub_u32 s50, s50, s51")
    e("s_lshl_b32 s51, s50, 19")
    e("s_lshl_b32 s52, s50, 7")
    def issue_W(i, n):
        e(f"s_add_u32 m0, s42, {RBASE + (i % NS)*SLOT + n*1024}")
        e(f"s_add_u32 s49, s51, {4*n*8192}")
        v = VWD if n < 2 else VWD2
        L.vmem(f"buffer_load_dwordx4 v{v}, s[{SW}:{SW+3}], s49 offen lds", f"W{i}")
        if n == 3:
            e("s_add_u32 s51, s51, 262144")
            e("s_cmp_ge_u32 s51, 5242880")
            e("s_cselect_b32 s51, 0, s51")
    def issue_X(d, jj):
        e(f"s_add_u32 m0, s43, {XBASE + (d % 3)*XSLOT + jj*1024}")
        e(f"s_add_u32 s49, s52, {jj*10240}")
        v = VXD if jj % 2 == 0 else VXD2
        L.vmem(f"buffer_load_dwordx4 v{v}, s[{SX}:{SX+3}], s49 offen lds", f"X{d}")
        if jj == 11:
            e("s_add_u32 s52, s52, 128")
            e("s_cmp_ge_u32 s52, 1280")
            e("s_cselect_b32 s52, 0, s52")
    for n in range(4): issue_W(0, n)
    for jj in range(12): issue_X(0, jj)
    for i in range(1, PD):
        for n in range(4): issue_W(i, n)
        if i == 1:
            for jj in range(12): issue_X(1, jj)
    for i in range(NIT):
        L.wait_vm({f"W{i}", f"X{i//2}"})
        e("s_barrier")
        if i + PD < NIT:
            for n in range(4): issue_W(i + PD, n)
        if i // 2 + 2 < NIT // 2:
            for n in range(6): issue_X(i // 2 + 2, 6 * (i % 2) + n)
    e(f"s_mov_b32 s{SD}, s94")
    e(f"s_mov_b32 s{SD+1}, s95")
    e(f"s_mov_b32 s{SD+2}, 256")
    e(f"s_mov_b32 s{SD+3}, 0x00020000")
    get_nonce(e, "wx")
    e("s_barrier")
    e("s_branch L_p2load")
    A.lines += L.lines
    A.label("L_kv")
    L = Asm(); e = L.e
    VKD, VVA, VVB = 4, 5, 6
    e("s_cmp_lg_u32 s2, 0")
    e("s_cbranch_scc1 L_nonp")
    e("s_cmp_lg_u32 s55, 6")
    e("s_cbranch_scc1 L_nonp")
    e("s_memrealtime s[96:97]")
    e("s_waitcnt lgkmcnt(0)")
    e("s_or_b32 s96, s96, 1")
    e("v_mov_b32 v14, s96")
    e("v_mov_b32 v15, s97")
    e("v_mov_b32 v16, 0")
    e(f"buffer_store_dwordx2 v[14:15], v16, s[{SD}:{SD+3}], 0 offen sc0 sc1")
    e("s_waitcnt vmcnt(0)")
    e("L_nonp:")
    e("s_and_b32 s53, s38, 1")
    e("s_mul_i32 s44, s53, 24576")
    e("s_lshl_b32 s54, s53, 13")
    e("s_mul_i32 s52, s53, 786432")
    e(f"v_xor_b32 v{T0}, v{VI}, v{VG}")
    e(f"v_lshlrev_b32 v{T0}, 4, v{T0}")
    e(f"v_lshlrev_b32 v{T1}, 8, v{VG}")
    e(f"v_add_u32 v{VKD}, v{T0}, v{T1}")
    for m in range(1, 4): e(f"v_xor_b32 v{7+m}, {m*64}, v{VKD}")
    e(f"v_lshlrev_b32 v{T0}, 1, v{VG}")
    e(f"v_xor_b32 v{T0}, v{T0}, v{VI}")
    e(f"v_lshlrev_b32 v{T0}, 4, v{T0}")
    e(f"v_add_u32 v{VVA}, v{T0}, v{T1}")
    e(f"v_xor_b32 v{VVB}, 128, v{VVA}")
    def issue_K(jj, b):
        q, m = jj // 4, jj % 4
        e(f"s_add_u32 m0, s44, {b*12288 + q*4096}")
        e(f"s_add_u32 s49, s52, {b*393216 + q*4096}")
        v = VKD if m == 0 else 7 + m
        L.vmem(f"buffer_load_dwordx4 v{v}, s[{SK}:{SK+3}], s49 offen offset:{m*1024} lds", "K")
    def issue_V(jj, b):
        q, m = jj // 4, jj % 4
        e(f"s_add_u32 m0, s54, {VB[q] + b*4096}")
        e(f"s_add_u32 s49, s52, {b*393216 + q*4096}")
        v = VVA if (jj % 2 == 0) else VVB
        L.vmem(f"buffer_load_dwordx4 v{v}, s[{SV}:{SV+3}], s49 offen offset:{m*1024} lds", "V")
    K0 = env("K0", 0); KN = env("KN", 12)
    e("s_and_b32 s40, s3, 3")
    e("s_mul_i32 s40, s40, 1310720")
    e(f"s_add_u32 s{ST}, s56, s40")
    e(f"s_addc_u32 s{ST+1}, s57, 0")
    e(f"s_mov_b32 s{ST+2}, 1310720")
    e(f"s_mov_b32 s{ST+3}, 0x00020000")
    e("s_lshl_b32 s40, s4, 1")
    e("s_add_u32 s40, s40, s53")
    e("s_mul_i32 s51, s40, 5120")
    e(f"v_min_u32 v12, 39, v0")
    e(f"v_lshlrev_b32 v12, 7, v12")
    TAI = [int(x) for x in os.environ.get("TAI", "12,13,14,15").split(",")]
    for i in range(NIT):
        if i == NIT - 1: L.wait_vm({"K"})
        e("s_barrier")
        for qd in range(4):
            if TAI[qd] == i and "notA" not in OPT:
                e(f"s_add_u32 s49, s51, {qd*327680}")
                L.vmem(f"buffer_load_dword v13, v12, s[{ST}:{ST+3}], s49 offen", "T")
        for p in range(12):
            if K0 + (p * KN) // 12 == i:
                for b in range(2): issue_K(p, b)
        if i in (16, 17, 18):
            for b in range(2):
                for jj in range(4): issue_V({16: 0, 17: 8, 18: 4}[i] + jj, b)
    get_nonce(e, "kv")
    e("s_barrier")
    e("L_p2load:")
    L.vm = []
    phase2_loader(L, "a")
    A.lines += L.lines
    e = A.e
    A.label("L_compute")
    e("s_mul_i32 s43, s38, 6144")
    e("s_mul_i32 s44, s38, 12288")
    e("s_lshl_b32 s54, s38, 12")
    e("s_add_u32 s41, s39, s38")
    e("s_mul_i32 s40, s3, 48")
    e("s_mul_i32 s41, s41, 3")
    e("s_add_u32 s40, s40, s41")
    e("s_lshl_b32 s40, s40, 5")
    e("s_and_b32 s41, s7, 7")
    e("s_lshl_b32 s41, s41, 2")
    e("s_add_u32 s40, s40, s41")
    e("s_lshl_b32 s40, s40, 10")
    e(f"s_add_u32 s{SO}, s36, s40")
    e(f"s_addc_u32 s{SO+1}, s37, 0")
    e(f"s_sub_u32 s{SO+2}, {OBYTES}, s40")
    e(f"s_mov_b32 s{SO+3}, 0x00020000")
    e("s_mov_b32 s47, 32768")
    e("s_mov_b32 s48, 65536")
    e(f"v_lshrrev_b32 v{T0}, 1, v{VI}")
    e(f"v_xor_b32 v{T0}, v{T0}, v{VG}")
    e(f"v_lshlrev_b32 v{T0}, 4, v{T0}")
    e(f"v_lshlrev_b32 v{T1}, 7, v{VI}")
    e(f"v_add_u32 v{T0}, v{T0}, v{T1}")
    e(f"s_add_u32 s40, s43, {XBASE}")
    e(f"v_add_u32 v{VXR}, s40, v{T0}")
    e(f"v_xor_b32 v{VXR+1}, 64, v{VXR}")
    e(f"v_xor_b32 v{T0}, v{VI}, v{VG}")
    e(f"v_lshlrev_b32 v{T0}, 4, v{T0}")
    e(f"v_lshlrev_b32 v{T1}, 8, v{VI}")
    e(f"v_add_u32 v{T0}, v{T0}, v{T1}")
    e(f"v_add_u32 v{VKR}, s44, v{T0}")
    e(f"v_lshlrev_b32 v{T0}, 3, v{VG}")
    e(f"v_add_u32 v{T0}, v{T0}, v{VR}")
    e(f"v_lshlrev_b32 v{T0}, 8, v{T0}")
    e(f"v_and_b32 v{T1}, 1, v{VR}")
    e(f"v_xor_b32 v{T1}, v{T1}, v{VC}")
    e(f"v_lshlrev_b32 v{T1}, 4, v{T1}")
    e(f"v_add_u32 v{T0}, v{T0}, v{T1}")
    e(f"v_and_b32 v{T1}, 1, v{VC}")
    e(f"v_lshlrev_b32 v{T1}, 3, v{T1}")
    e(f"v_add_u32 v{T0}, v{T0}, v{T1}")
    e(f"v_add_u32 v{T0}, {RBASE}, v{T0}")
    e(f"v_and_b32 v{T1}, 1, v{VG}")
    e(f"v_lshlrev_b32 v{T1}, 1, v{T1}")
    e(f"v_lshrrev_b32 v{T2}, 1, v{VR}")
    e(f"v_or_b32 v{T1}, v{T1}, v{T2}")
    for s_ in range(4):
        e(f"v_xor_b32 v{T2}, {s_}, v{T1}")
        e(f"v_lshlrev_b32 v{T2}, 6, v{T2}")
        e(f"v_add_u32 v{TRA+2*s_}, v{T0}, v{T2}")
        e(f"v_xor_b32 v{TRA+2*s_+1}, 8, v{TRA+2*s_}")
    phase2_srds(e)
    def reads(i):
        Fb = F[i % 2]; Xb = XF[i % 2]
        so = (i % NS) * SLOT
        Lr = []
        for tq in range(3):
            Lr.append(f"ds_read_b128 {ar(Xb+tq*4,4)}, v{VXR + i % 2} offset:{((i//2) % 3)*XSLOT + tq*2048}")
        for t in range(8):
            for hh in range(2):
                Lr.append(f"ds_read_b64_tr_b16 {ar(Fb + t*4 + hh*2, 2)}, v{TRA+t} offset:{so + hh*1024}")
        return Lr
    def mfma_q1(i, t, tq):
        Fb = F[i % 2]; Xb = XF[i % 2]
        a = ACC + (t * 3 + tq) * 4
        c = "0" if i == 0 else vr(a, 4)
        e(f"v_mfma_f32_16x16x32_bf16 {vr(a,4)}, {ar(Fb+t*4,4)}, {ar(Xb+tq*4,4)}, {c}")
    for i in range(NIT):
        A.c(f"---- iteration {i}")
        if i == 0: A.stamp()
        e("s_barrier")
        if i % 4 == 0: A.stamp()
        R = reads(i)
        for t in range(8):
            for tq in range(3):
                if i > 0: mfma_q1(i - 1, t, tq)
                if R: e(R.pop(0))
        e("s_waitcnt lgkmcnt(0)")
    for t in range(8):
        for tq in range(3): mfma_q1(NIT - 1, t, tq)
    e(f"v_mov_b32 v{T0}, 0")
    e(f"buffer_load_dwordx2 v[{VN}:{VN+1}], v{T0}, s[{SD}:{SD+3}], 0 offen sc0 sc1")
    KA = 0
    for s_ in range(1, 4): e(f"v_xor_b32 v{T0+s_-1}, {s_*64}, v{VKR}")
    for tk in range(3):
        for s_ in range(4):
            va = VKR if s_ == 0 else T0 + s_ - 1
            e(f"ds_read_b128 {ar(KA+(tk*4+s_)*4,4)}, v{va} offset:{tk*4096}")
    e("s_mov_b32 s50, 0xffff0000")
    e("s_mov_b32 s51, 0xffff0000")
    e("s_mov_b32 s52, 0x3e0293ee")
    def QP(tq, s_): return ACC + ((2 * s_) * 3 + tq) * 4
    for s_ in range(4):
        for tq in range(3):
            a = QP(tq, s_); b = ACC + ((2 * s_ + 1) * 3 + tq) * 4
            e(f"v_cvt_pk_bf16_f32 v{a}, v{a}, v{a+1}")
            e(f"v_cvt_pk_bf16_f32 v{a+1}, v{a+2}, v{a+3}")
            e(f"v_cvt_pk_bf16_f32 v{a+2}, v{b}, v{b+1}")
            e(f"v_cvt_pk_bf16_f32 v{a+3}, v{b+2}, v{b+3}")
    e("s_mov_b64 exec, s[50:51]")
    for s_ in range(4):
        for tq in range(3):
            d = QP(tq, s_)
            e(f"v_swap_b32 v{d}, v{d+2}")
            e(f"v_swap_b32 v{d+1}, v{d+3}")
    e("s_mov_b64 exec, -1")
    e(f"v_lshlrev_b32 v{T0}, 2, v{VG}")
    e(f"v_add_u32 v{T0}, v{T0}, v{VR}")
    e(f"v_and_b32 v{T1}, 7, v{T0}")
    e(f"v_lshlrev_b32 v{T0}, 8, v{T0}")
    e(f"v_lshrrev_b32 v{T2}, 1, v{VC}")
    e(f"v_lshlrev_b32 v{T2}, 4, v{T2}")
    e(f"v_add_u32 v{T0}, v{T0}, v{T2}")
    e(f"v_and_b32 v{T2}, 1, v{VC}")
    e(f"v_lshlrev_b32 v{T2}, 3, v{T2}")
    e(f"v_add_u32 v118, v{T0}, v{T2}")
    e(f"v_mov_b32 v119, v{T1}")
    e(f"s_add_u32 s40, s54, {VB[0]}")
    e(f"v_add_u32 v{T0}, s40, v118")
    A.stamp()
    e("s_waitcnt lgkmcnt(0)")
    STB = [12, 36, 60]
    PPB = [0, 6, 24]
    def st_mfma(tq):
        Lm = []
        for tk in range(3):
            d = STB[tq] + tk * 4
            for s_ in range(4):
                c = "0" if s_ == 0 else vr(d, 4)
                Lm.append(f"v_mfma_f32_16x16x32_bf16 {vr(d,4)}, {ar(KA+(tk*4+s_)*4,4)}, {vr(QP(tq,s_),4)}, {c}")
        return Lm
    def softmax(tq, pp):
        b = STB[tq]
        m = 120 + tq * 4; m2 = m + 1; sm = m + 2; sm2 = m + 3
        Lv = []
        x = Lv.append
        x(f"v_max3_f32 v{m}, v{b}, v{b+1}, v{b+2}")
        x(f"v_max3_f32 v{m2}, v{b+3}, v{b+4}, v{b+5}")
        x(f"v_max3_f32 v{m}, v{m}, v{b+6}, v{b+7}")
        x(f"v_max3_f32 v{m2}, v{m2}, v{b+8}, v{b+9}")
        x(f"v_max3_f32 v{m}, v{m}, v{b+10}, v{b+11}")
        x(f"v_max_f32 v{m}, v{m}, v{m2}")
        x(f"v_mov_b32 v{m2}, v{m}")
        x("s_nop 1")
        x(f"v_permlane16_swap_b32 v{m}, v{m2}")
        x(f"v_max_f32 v{m}, v{m}, v{m2}")
        x(f"v_mov_b32 v{m2}, v{m}")
        x("s_nop 1")
        x(f"v_permlane32_swap_b32 v{m}, v{m2}")
        x(f"v_max_f32 v{m}, v{m}, v{m2}")
        x(f"v_mul_f32 v{m}, s52, v{m}")
        for r in range(12): x(f"v_fma_f32 v{b+r}, v{b+r}, s52, -v{m}")
        for r in range(12): x(f"v_exp_f32 v{b+r}, v{b+r}")
        x("s_nop 0")
        x(f"v_add_f32 v{sm}, v{b}, v{b+1}")
        x(f"v_add_f32 v{sm2}, v{b+2}, v{b+3}")
        for r in range(4, 12, 2):
            x(f"v_add_f32 v{sm}, v{sm}, v{b+r}")
            x(f"v_add_f32 v{sm2}, v{sm2}, v{b+r+1}")
        x(f"v_add_f32 v{sm}, v{sm}, v{sm2}")
        x(f"v_mov_b32 v{sm2}, v{sm}")
        x("s_nop 1")
        x(f"v_permlane16_swap_b32 v{sm}, v{sm2}")
        x(f"v_add_f32 v{sm}, v{sm}, v{sm2}")
        x(f"v_mov_b32 v{sm2}, v{sm}")
        x("s_nop 1")
        x(f"v_permlane32_swap_b32 v{sm}, v{sm2}")
        x(f"v_add_f32 v{sm}, v{sm}, v{sm2}")
        x(f"v_rcp_f32 v{sm}, v{sm}")
        x("s_nop 0")
        for r in range(12): x(f"v_mul_f32 v{b+r}, v{b+r}, v{sm}")
        for k in range(6): x(f"v_cvt_pk_bf16_f32 v{pp+k}, v{b+2*k}, v{b+2*k+1}")
        return Lv
    for m_ in st_mfma(0): e(m_)
    vaddr = []
    for t in range(8):
        vaddr += [f"v_xor_b32 v{T2}, {t}, v{T1}", f"v_lshlrev_b32 v{T2}, 5, v{T2}", f"v_add_u32 v{TRA+t}, v{T0}, v{T2}"]
    M1 = st_mfma(1)
    for k, m_ in enumerate(M1):
        e(m_)
        for _ in range(2): e(vaddr.pop(0))
    M2 = st_mfma(2)
    S0 = softmax(0, 84)
    k = 0
    for ins in S0:
        e(ins); k += 1
        if k % 3 == 0 and M2: e(M2.pop(0))
    assert not M2
    PPB = [84, 90, 0]
    for ins in softmax(1, 90): e(ins)
    for ins in softmax(2, 0): e(ins)
    A.stamp()
    e("s_barrier")
    A.stamp()
    VF = 48
    def v_reads(t):
        for tk in range(3):
            e(f"ds_read_b64_tr_b16 {ar(VF+(t%6)*6+tk*2,2)}, v{TRA+t} offset:{VB[tk]-VB[0]}")
    OR_ = [36, 60]; OP_ = [12, 24]
    for t in range(4): v_reads(t)
    def pv32(t):
        f = VF + (t % 6) * 6
        for tq in range(3):
            o = OR_[(t // 2) % 2] + ((t % 2) * 3 + tq) * 4
            e(f"v_mfma_f32_16x16x32_bf16 {vr(o,4)}, {ar(f,4)}, {vr(PPB[tq],4)}, 0")
    def pv16(t):
        f = VF + (t % 6) * 6
        for tq in range(3):
            o = OR_[(t // 2) % 2] + ((t % 2) * 3 + tq) * 4
            e(f"v_mfma_f32_16x16x16_bf16 {vr(o,4)}, {ar(f+4,2)}, {vr(PPB[tq]+4,2)}, {vr(o,4)}")
    def conv_store(q):
        R = OR_[q % 2]; P = OP_[q % 2]
        for tq in range(3):
            d = P + tq * 4
            for u in range(2):
                o = R + (u * 3 + tq) * 4
                e(f"v_cvt_pk_bf16_f32 v{d+2*u}, v{o}, v{o+1}")
                e(f"v_cvt_pk_bf16_f32 v{d+2*u+1}, v{o+2}, v{o+3}")
            so = ["0", "s47", "s48"][tq]
            e(f"buffer_store_dwordx4 {vr(d,4)}, v{VL16}, s[{SO}:{SO+3}], {so} offen offset:{q*1024} sc1")
    for q in range(4):
        t0, t1 = 2 * q, 2 * q + 1
        npend = (min(2 * q + 3, 7) - t1) * 3
        e(f"s_waitcnt lgkmcnt({npend})")
        pv32(t0); pv32(t1)
        for t in (2 * q + 4, 2 * q + 5):
            if t < 8: v_reads(t)
        if q > 0: conv_store(q - 1)
        else: e("s_nop 5")
        pv16(t0); pv16(t1)
    e("s_nop 7")
    conv_store(3)
    A.stamp()
    TR = 96; VBR = 104
    e("s_lshr_b32 s40, s38, 1")
    e("s_lshl_b32 s40, s40, 2")
    e(f"v_xor_b32 v{T1}, s40, v119")
    for tn in range(4):
        e(f"v_xor_b32 v{T2}, {tn}, v{T1}")
        e(f"v_lshlrev_b32 v{T2}, 5, v{T2}")
        e(f"v_add_u32 v{TR+tn}, v118, v{T2}")
    e("s_and_b32 s40, s38, 1")
    e("s_lshl_b32 s40, s40, 13")
    e(f"s_add_u32 s40, s40, {BBASE}")
    e(f"v_add_u32 v{VBR}, s40, v{VL16}")
    e("s_waitcnt vmcnt(0)")
    e("s_barrier")
    e(f"v_readfirstlane_b32 s44, v{VN}")
    e("s_cmp_lg_u32 s44, 0")
    e("s_cbranch_scc1 L_nonce_ok")
    get_nonce(e, "c")
    A.label("L_nonce_ok")
    A.stamp()
    e("s_cmp_ge_u32 s4, 30")
    e("s_cbranch_scc1 L_fin")
    e("s_mul_i32 s40, s60, 327680")
    e("s_mul_i32 s41, s5, 1280")
    e("s_add_u32 s40, s40, s41")
    e("s_lshl_b32 s41, s61, 8")
    e("s_add_u32 s40, s40, s41")
    e(f"s_add_u32 s{SOUT}, s92, s40")
    e(f"s_addc_u32 s{SOUT+1}, s93, 0")
    e(f"s_sub_u32 s{SOUT+2}, 1966080, s40")
    e(f"s_mov_b32 s{SOUT+3}, 0x00020000")
    e("s_mul_i32 s63, s5, 30")
    e("s_add_u32 s63, s63, s4")
    e("s_lshl_b32 s40, s63, 18")
    e(f"s_add_u32 s40, s40, {PBASE}")
    e(f"s_add_u32 s{SP}, s36, s40")
    e(f"s_addc_u32 s{SP+1}, s37, 0")
    e(f"s_mov_b32 s{SP+2}, 262144")
    e(f"s_mov_b32 s{SP+3}, 0x00020000")
    e("s_barrier")
    A.stamp()
    AFr = [0, 16]; BFr = [32, 48]
    def reads2(n):
        i, sub = n >> 1, n & 1
        so = (i % NSL) * ASLOT
        Lr = []
        for tt in range(4):
            Lr.append(f"ds_read_b128 {ar(BFr[n%2]+tt*4,4)}, v{VBR} offset:{so + tt*2048 + sub*1024}")
        for tn in range(4):
            for hh in range(2):
                Lr.append(f"ds_read_b64_tr_b16 {ar(AFr[n%2]+tn*4+hh*2,2)}, v{TR+tn} offset:{so + sub*8192 + hh*4096}")
        return Lr
    def mfma2(n, tn, tt):
        a = ACC + (tn * 4 + tt) * 4
        c = "0" if n == 0 else vr(a, 4)
        e(f"v_mfma_f32_16x16x32_bf16 {vr(a,4)}, {ar(AFr[n%2]+tn*4,4)}, {ar(BFr[n%2]+tt*4,4)}, {c}")
    for n in range(2 * NIT2):
        if n % 2 == 0:
            A.c(f"---- p2 stage {n//2}")
            e("s_barrier")
            if n % 8 == 0: A.stamp()
        R = reads2(n)
        for tn in range(4):
            for tt in range(4):
                if n > 0: mfma2(n - 1, tn, tt)
                if R: e(R.pop(0))
        e("s_waitcnt lgkmcnt(0)")
    for tn in range(4):
        for tt in range(4): mfma2(2 * NIT2 - 1, tn, tt)
    A.stamp()
    e("s_lshl_b32 s40, s62, 14")
    e("s_lshl_b32 s41, s38, 12")
    e("s_add_u32 s40, s40, s41")
    e("s_nop 4")
    for tn in range(4):
        e(f"s_cmp_eq_u32 s62, {tn}")
        e(f"s_cbranch_scc1 L_skipst{tn}")
        e(f"s_add_u32 s42, s40, {tn*65536}")
        for tt in range(4):
            a = ACC + (tn * 4 + tt) * 4
            e(f"buffer_store_dwordx4 {vr(a,4)}, v{VL16}, s[{SP}:{SP+3}], s42 offen offset:{tt*1024} sc0 sc1")
        A.label(f"L_skipst{tn}")
    OWN = 64
    for tn in range(4):
        e(f"s_cmp_lg_u32 s62, {tn}")
        e(f"s_cbranch_scc1 L_skipmv{tn}")
        for r in range(16): e(f"v_mov_b32 v{OWN+r}, v{ACC+tn*16+r}")
        A.label(f"L_skipmv{tn}")
    e("s_lshl_b32 s43, s63, 2")
    e("s_add_u32 s43, s43, s38")
    e("s_lshl_b32 s43, s43, 7")
    e(f"s_add_u32 s43, s43, {F2BASE - F1BASE}")
    e("s_lshl_b32 s46, s62, 3")
    e(f"v_mov_b32 v{T2}, s46")
    e(f"v_and_b32 v{T0}, 3, v0") if False else None
    e(f"v_lshlrev_b32 v{T0}, 3, v{VC}")
    e("s_waitcnt vmcnt(0)")
    A.stamp()
    e("s_mov_b64 exec, 1")
    e(f"buffer_store_dwordx2 v[{VN}:{VN+1}], v{T2}, s[{SF}:{SF+3}], s43 offen sc0 sc1")
    e("s_mov_b64 exec, 15")
    e("s_mov_b32 s45, 0")
    A.label("L_poll2")
    e(f"buffer_load_dwordx2 v[80:81], v{T0}, s[{SF}:{SF+3}], s43 offen sc0 sc1")
    e("s_add_u32 s45, s45, 1")
    e("s_waitcnt vmcnt(0)")
    e(f"v_cmp_eq_u64 vcc, v[80:81], v[{VN}:{VN+1}]")
    e("s_cmp_ge_u32 s45, 0x100000")
    e("s_cbranch_scc1 L_poll2_d")
    e("s_cmp_eq_u64 vcc, 15")
    e("s_cbranch_scc0 L_poll2")
    A.label("L_poll2_d")
    e("s_mov_b64 exec, -1")
    A.stamp()
    e("s_lshl_b32 s40, s62, 16")
    e("s_add_u32 s40, s40, s41")
    for d in range(1, 4):
        e(f"s_add_u32 s42, s62, {d}")
        e("s_and_b32 s42, s42, 3")
        e("s_lshl_b32 s42, s42, 14")
        e("s_add_u32 s42, s42, s40")
        for tt in range(4):
            e(f"buffer_load_dwordx4 {vr(ACC+((d-1)*4+tt)*4,4)}, v{VL16}, s[{SP}:{SP+3}], s42 offen offset:{tt*1024} sc0 sc1")
    e(f"v_mul_u32_u24 v{T0}, 2560, v{VI}")
    e(f"v_lshlrev_b32 v{T1}, 3, v{VG}")
    e(f"v_add_u32 v{T0}, v{T0}, v{T1}")
    e("s_and_b32 s40, s38, 1")
    e("s_mul_i32 s40, s40, 163840")
    e("s_lshr_b32 s42, s38, 1")
    e("s_lshl_b32 s42, s42, 7")
    e("s_add_u32 s40, s40, s42")
    e("s_lshl_b32 s42, s62, 5")
    e("s_add_u32 s40, s40, s42")
    e("s_waitcnt vmcnt(0)")
    for tt in range(4):
        o = OWN + tt * 4
        for d in range(3):
            for r in range(4): e(f"v_add_f32 v{o+r}, v{o+r}, v{ACC+(d*4+tt)*4+r}")
        e(f"v_cvt_pk_bf16_f32 v{o}, v{o}, v{o+1}")
        e(f"v_cvt_pk_bf16_f32 v{o+1}, v{o+2}, v{o+3}")
        e(f"s_add_u32 s42, s40, {tt*40960}")
        e(f"buffer_store_dwordx2 {vr(o,2)}, v{T0}, s[{SOUT}:{SOUT+3}], s42 offen{' sc1' if 'scOut' in OPT else ''}")
    if DIAG:
        e("s_waitcnt vmcnt(0)")
        A.stamp()
    A.label("L_fin")
    if DIAG:
        e("s_lshl_b32 s40, s2, 2")
        e("s_add_u32 s40, s40, s38")
        e("s_lshl_b32 s40, s40, 8")
        e("s_add_u32 s40, s40, 0x8000000")
        e(f"s_add_u32 s{SP}, s36, s40")
        e(f"s_addc_u32 s{SP+1}, s37, 0")
        e(f"s_mov_b32 s{SP+2}, 256")
        e(f"s_mov_b32 s{SP+3}, 0x00020000")
        e(f"v_lshrrev_b32 v{T0}, 2, v{VL16}")
        e(f"buffer_store_dword v135, v{T0}, s[{SP}:{SP+3}], 0 offen")
    A.label("L_done")
    e("s_endpgm")
    return A.text(), NV, NA

def main():
    body, nv, na = gen()
    out = []
    out.append("; @launch grid=(256,1,1) block=(512,1,1) lds=163840")
    out.append('.amdgcn_target "amdgcn-amd-amdhsa--gfx950"')
    out.append(".text")
    name = NAME + "_kernel"
    out.append(f".globl {name}\n.p2align 8\n.type {name},@function\n{name}:")
    out.append(body)
    out.append('.section .rodata,"a"\n.p2align 6')
    out.append(f""".amdhsa_kernel {name}
  .amdhsa_next_free_vgpr {nv + na}
  .amdhsa_next_free_sgpr 100
  .amdhsa_accum_offset {nv}
  .amdhsa_group_segment_fixed_size 0
  .amdhsa_kernarg_size 104
  .amdhsa_user_sgpr_count 2
  .amdhsa_user_sgpr_kernarg_segment_ptr 1
  .amdhsa_system_sgpr_workgroup_id_x 1
.end_amdhsa_kernel
""")
    path = sys.argv[1] if len(sys.argv) > 1 else f"cdna_kernels/{NAME}.s"
    open(path, "w").write("\n".join(out))
main()
```

```python
import sys, os
DIAG = int(os.environ.get("DIAG", "0"))
EXP = os.environ.get("EXP", "").split(",")
OPT = os.environ.get("OPT", "").split(",")
NAME = "concat_heads__mha_block_cached__gqa_block_cached__near_ridge"
def env(k, d): return int(os.environ.get(k, str(d)))

class Asm:
    def __init__(self):
        self.lines = []; self.vm = []; self.nst = 0
    def e(self, s): self.lines.append("    " + s)
    def label(self, s): self.lines.append(s + ":")
    def c(self, s): self.lines.append("    ; " + s)
    def vmem(self, s, tag):
        self.e(s); self.vm.append(tag)
    def wait_vm(self, tags):
        last = -1
        for i, t in enumerate(self.vm):
            if t in tags: last = i
        if last < 0: return
        n = len(self.vm) - 1 - last
        assert n <= 63, n
        self.e(f"s_waitcnt vmcnt({n})")
        self.vm = self.vm[last + 1:]
    def stamp(self):
        if not DIAG: return
        n = self.nst; self.nst += 1
        assert n < 32
        self.e("s_memtime s[98:99]")
        self.e("s_waitcnt lgkmcnt(0)")
        self.e(f"v_writelane_b32 v135, s98, {n}")
    def text(self): return "\n".join(self.lines) + "\n"

def vr(b, n=1): return f"v{b}" if n == 1 else f"v[{b}:{b+n-1}]"
def ar(b, n=1): return f"a{b}" if n == 1 else f"a[{b}:{b+n-1}]"

OBYTES = 12582912
PBASE = 0x1000000
F1BASE = 0xF00000
F2BASE = 0xF10000

def gen():
    A = Asm(); e = A.e
    NS, NIT, PD = 5, 20, 4
    SLOT = 8192
    XBASE = 49152; XSLOT = 24576
    RBASE = XBASE + 3 * XSLOT
    VB = [XBASE + 1 * XSLOT, XBASE + 2 * XSLOT, RBASE]
    ACC = 0
    TRA = 96; VXR = 104; VKR = 106; VL16 = 107
    VI, VG, VR, VC = 108, 109, 110, 111
    T0, T1, T2 = 112, 113, 114
    VN = 116
    NV = 136; NA = 88
    F = [0, 32]; XF = [64, 76]
    SX, SW, SK, SV, SO = 8, 12, 16, 20, 24
    SA, SB, SP, SF, SOUT, SD, ST = 64, 68, 72, 76, 80, 84, 88
    TAI = [int(x) for x in os.environ.get("TAI", "19,19,19,19").split(",")]
    NSL, PD2, NIT2 = 4, 3, 16
    ASLOT = 16384; BBASE = 65536
    e("s_cmp_ge_u32 s2, 256")
    e("s_cbranch_scc1 L_done")
    A.stamp()
    e("s_and_b32 s3, s2, 7")
    e("s_lshr_b32 s4, s2, 3")
    e("s_lshr_b32 s5, s3, 2")
    e("s_mul_i32 s6, s5, 40")
    e("s_load_dwordx4 s[28:31], s[0:1], s6")
    e("s_load_dwordx4 s[32:35], s[0:1], s6 offset:16")
    e("s_load_dwordx2 s[56:57], s[0:1], s6 offset:32")
    e("s_load_dwordx4 s[92:95], s[0:1], 80")
    e("s_load_dwordx2 s[36:37], s[0:1], 96")
    e(f"v_lshrrev_b32 v{T0}, 6, v0")
    e("s_and_b32 s7, s3, 3")
    e("s_lshl_b32 s7, s7, 3")
    e(f"v_readfirstlane_b32 s55, v{T0}")
    e("s_lshr_b32 s39, s4, 2")
    e("s_add_u32 s7, s7, s39")
    e("s_and_b32 s38, s55, 3")
    e("s_and_b32 s39, s4, 3")
    e("s_lshl_b32 s39, s39, 2")
    e("v_and_b32 v0, 63, v0")
    e(f"v_and_b32 v{VI}, 15, v0")
    e(f"v_lshrrev_b32 v{VG}, 4, v0")
    e(f"v_lshlrev_b32 v{VL16}, 4, v0")
    e(f"v_bfe_u32 v{VR}, v0, 2, 2")
    e(f"v_and_b32 v{VC}, 3, v0")
    e("s_waitcnt lgkmcnt(0)")
    e("s_mul_i32 s40, s39, 61440")
    e(f"s_add_u32 s{SX}, s28, s40")
    e(f"s_addc_u32 s{SX+1}, s29, 0")
    e(f"s_mov_b32 s{SX+2}, 245760")
    e(f"s_mov_b32 s{SX+3}, 0x00020000")
    e("s_lshl_b32 s40, s7, 8")
    e(f"s_add_u32 s{SW}, s34, s40")
    e(f"s_addc_u32 s{SW+1}, s35, 0")
    e(f"s_sub_u32 s{SW+2}, {640*8192}, s40")
    e(f"s_mov_b32 s{SW+3}, 0x00020000")
    e("s_cmp_lt_u32 s55, 4")
    e("s_cbranch_scc1 L_srd_rest")
    e("s_cmp_lt_u32 s55, 6")
    e("s_cbranch_scc1 L_wx")
    A.label("L_srd_rest")
    e("s_lshl_b32 s40, s39, 5")
    e("s_add_u32 s40, s40, s7")
    e("s_mul_i32 s40, s40, 12288")
    e(f"s_add_u32 s{SK}, s30, s40")
    e(f"s_addc_u32 s{SK+1}, s31, 0")
    e(f"s_mov_b32 s{SK+2}, {3*393216 + 12288}")
    e(f"s_mov_b32 s{SK+3}, 0x00020000")
    e(f"s_add_u32 s{SV}, s32, s40")
    e(f"s_addc_u32 s{SV+1}, s33, 0")
    e(f"s_mov_b32 s{SV+2}, {3*393216 + 12288}")
    e(f"s_mov_b32 s{SV+3}, 0x00020000")
    e(f"s_mov_b32 s{SD}, s94")
    e(f"s_mov_b32 s{SD+1}, s95")
    e(f"s_mov_b32 s{SD+2}, 256")
    e(f"s_mov_b32 s{SD+3}, 0x00020000")
    e("s_cmp_lt_u32 s55, 4")
    e("s_cbranch_scc1 L_compute")
    e("s_branch L_kv")

    def phase2_srds(e):
        e("s_mul_i32 s60, s4, 52")
        e("s_lshr_b32 s60, s60, 8")
        e("s_mul_i32 s61, s60, 5")
        e("s_sub_u32 s61, s4, s61")
        e("s_and_b32 s62, s3, 3")
        e(f"s_add_u32 s{SF}, s36, {F1BASE}")
        e(f"s_addc_u32 s{SF+1}, s37, 0")
        e(f"s_mov_b32 s{SF+2}, 0x20000")
        e(f"s_mov_b32 s{SF+3}, 0x00020000")
    def get_nonce(e, lbl):
        e(f"v_mov_b32 v{T0}, 0")
        e("s_mov_b32 s45, 0")
        A_label = f"L_nonce_{lbl}"
        e(f"{A_label}:")
        e(f"buffer_load_dwordx2 v[{VN}:{VN+1}], v{T0}, s[{SD}:{SD+3}], 0 offen sc0 sc1")
        e("s_add_u32 s45, s45, 1")
        e("s_waitcnt vmcnt(0)")
        e(f"v_readfirstlane_b32 s44, v{VN}")
        e("s_cmp_ge_u32 s45, 0x100000")
        e(f"s_cbranch_scc1 {A_label}_d")
        e("s_cmp_eq_u32 s44, 0")
        e(f"s_cbranch_scc1 {A_label}")
        e(f"{A_label}_d:")

    def publish(e):
        e("s_lshl_b32 s40, s3, 13")
        e("s_lshl_b32 s41, s4, 3")
        e("v_lshlrev_b32 v8, 8, v0")
        e("v_add_u32 v8, s41, v8")
        e("s_mov_b32 exec_hi, 0")
        e(f"buffer_store_dwordx2 v[{VN}:{VN+1}], v8, s[{SF}:{SF+3}], s40 offen sc0 sc1")
    def phase2_loader(L):
        e = L.e
        VAD, VAD2 = 1, 2
        e("s_cmp_ge_u32 s4, 30")
        e("s_cbranch_scc1 L_done")
        phase2_srds(e)
        e("s_mul_i32 s40, s62, 1310720")
        e("s_lshl_b32 s41, s61, 8")
        e("s_add_u32 s40, s40, s41")
        e(f"s_add_u32 s{SA}, s56, s40")
        e(f"s_addc_u32 s{SA+1}, s57, 0")
        e(f"s_sub_u32 s{SA+2}, 5242880, s40")
        e(f"s_mov_b32 s{SA+3}, 0x00020000")
        e("s_mul_i32 s40, s3, 48")
        e("s_lshl_b32 s41, s60, 3")
        e("s_add_u32 s40, s40, s41")
        e("s_lshl_b32 s40, s40, 15")
        e(f"s_add_u32 s{SB}, s36, s40")
        e(f"s_addc_u32 s{SB+1}, s37, 0")
        e(f"s_sub_u32 s{SB+2}, {OBYTES}, s40")
        e(f"s_mov_b32 s{SB+3}, 0x00020000")
        e(f"v_lshlrev_b32 v{T0}, 1, v{VG}")
        e(f"v_xor_b32 v{T0}, v{T0}, v{VI}")
        e(f"v_lshlrev_b32 v{T0}, 4, v{T0}")
        e(f"v_mul_u32_u24 v{T1}, 1280, v{VG}")
        e(f"v_add_u32 v{VAD}, v{T0}, v{T1}")
        e(f"v_xor_b32 v{VAD2}, 128, v{VAD}")
        e("s_lshl_b32 s42, s38, 13")
        e("s_mul_i32 s43, s38, 40960")
        e("s_lshl_b32 s46, s38, 17")
        def issueA(i):
            for n in range(8):
                e(f"s_add_u32 m0, s42, {(i % NSL)*ASLOT + n*1024}")
                e(f"s_add_u32 s47, s43, {(64*i + 4*n)*1280}")
                v = VAD if n % 2 == 0 else VAD2
                L.vmem(f"buffer_load_dwordx4 v{v}, s[{SA}:{SA+3}], s47 offen lds", f"S{i}")
        def issueB(i):
            for m in (0, 2, 4, 6, 1, 3, 5, 7):
                e(f"s_add_u32 m0, s42, {BBASE + (i % NSL)*ASLOT + m*1024}")
                e(f"s_add_u32 s47, s46, {(m >> 1)*32768 + (2*i + (m & 1))*1024}")
                L.vmem(f"buffer_load_dwordx4 v{VL16}, s[{SB}:{SB+3}], s47 offen sc1 lds", f"S{i}")
        if "lateA" not in OPT:
            for i in range(PD2): issueA(i)
        e("s_barrier")
        if "lateA" in OPT:
            for i in range(PD2): issueA(i)
        e("s_barrier")
        issueB(0); issueB(1)
        e("s_barrier")
        issueB(2)
        for i in range(NIT2):
            L.wait_vm({f"S{i}"})
            e("s_barrier")
            if i + PD2 < NIT2:
                issueB(i + PD2); issueA(i + PD2)
        e("s_endpgm")
    def phase2_poller(L):
        e = L.e
        phase2_srds(e)
        e("s_barrier")
        e("s_cmp_eq_u32 s55, 6")
        e("s_cbranch_scc1 L_pub")
        for qd in range(4):
            if TAI[qd] >= 20:
                e(f"s_add_u32 s49, s51, {qd*327680}")
                e(f"buffer_load_dword v13, v12, s[{ST}:{ST+3}], s49 offen")
                e(f"s_sub_u32 s49, s49, 5120")
                e(f"buffer_load_dword v13, v12, s[{ST}:{ST+3}], s49 offen")
        e("s_endpgm")
        e("L_pub:")
        publish(e)
        e("s_cmp_ge_u32 s4, 30")
        e("s_cbranch_scc1 L_done")
        e("s_lshl_b32 s41, s4, 8")
        e("s_add_u32 s40, s40, s41")
        e("v_lshlrev_b32 v9, 3, v0")
        e("s_mul_i32 s41, s60, 43")
        e("s_lshr_b32 s41, s41, 6")
        e("s_lshl_b32 s42, s60, 1")
        e("s_add_u32 s42, s42, 1")
        e("s_mul_i32 s42, s42, 43")
        e("s_lshr_b32 s42, s42, 7")
        e("s_lshl_b32 s41, 1, s41")
        e("s_lshl_b32 s42, 1, s42")
        e("s_or_b32 s50, s41, s42")
        e("s_mov_b32 s51, 0")
        e("s_mov_b32 s45, 0")
        e("s_mov_b32 s54, 0x11111111")
        e("s_not_b32 s49, s50")
        e("s_and_b32 s49, s49, 15")
        e("s_mul_i32 s49, s49, 0x11111111")
        e(f"v_mov_b32 v10, {163840 - 64}")
        def pick(n):
            lbl = f"L_pick_{n}"
            e(f"{lbl}:")
            e("s_or_b32 s52, s51, s49")
            e("s_lshr_b32 s53, s52, 1")
            e("s_and_b32 s52, s52, s53")
            e("s_lshr_b32 s53, s52, 2")
            e("s_and_b32 s52, s52, s53")
            if "dyn" in OPT: e("s_and_b32 s52, s52, s54")
            else: e(f"s_and_b32 s52, s52, {1 << (4*n)}")
            e(f"s_cbranch_scc1 {lbl}_d")
            e(f"buffer_load_dwordx2 v[4:5], v9, s[{SF}:{SF+3}], s40 offen sc0 sc1")
            e("s_add_u32 s45, s45, 1")
            e("s_waitcnt vmcnt(0)")
            e(f"v_cmp_eq_u64 vcc, v[4:5], v[{VN}:{VN+1}]")
            e("s_mov_b32 s51, vcc_lo")
            e("s_cmp_lt_u32 s45, 0x100000")
            e(f"s_cbranch_scc1 {lbl}")
            e("s_mov_b32 s51, -1")
            e(f"s_branch {lbl}")
            e(f"{lbl}_d:")
        pick(0)
        e("s_barrier")
        pick(1)
        e("s_barrier")
        for i in range(NIT2):
            st = i + PD2
            if st < NIT2 and st % 2 == 0: pick(st >> 1)
            e("s_barrier")
        e("s_endpgm")

    A.label("L_wx")
    L = Asm(); e = L.e
    VXD, VXD2, VWD, VWD2 = 1, 2, 3, 4
    e("s_lshl_b32 s42, s38, 12")
    e("s_mul_i32 s43, s38, 12288")
    e(f"v_and_b32 v{T0}, 7, v0")
    e(f"v_xor_b32 v{T0}, v{T0}, v{VG}")
    e(f"v_lshlrev_b32 v{T0}, 4, v{T0}")
    e(f"v_lshrrev_b32 v{T1}, 3, v0")
    e(f"v_mul_u32_u24 v{T1}, 1280, v{T1}")
    e(f"v_add_u32 v{VXD}, v{T0}, v{T1}")
    e("s_mul_i32 s40, s38, 122880")
    e(f"v_add_u32 v{VXD}, s40, v{VXD}")
    e(f"v_xor_b32 v{VXD2}, 64, v{VXD}")
    e(f"v_lshrrev_b32 v{T0}, 1, v{VG}")
    e(f"v_lshlrev_b32 v{T0}, 2, v{T0}")
    e(f"v_and_b32 v{T1}, 1, v{VG}")
    e(f"v_or_b32 v{T0}, v{T0}, v{T1}")
    e(f"v_xor_b32 v{T0}, v{T0}, v{VI}")
    e(f"v_lshlrev_b32 v{T0}, 4, v{T0}")
    e(f"v_lshlrev_b32 v{T1}, 13, v{VG}")
    e(f"v_add_u32 v{VWD}, v{T0}, v{T1}")
    e("s_lshl_b32 s40, s38, 17")
    e(f"v_add_u32 v{VWD}, s40, v{VWD}")
    e(f"v_xor_b32 v{VWD2}, 128, v{VWD}")
    RA = env("RA", 3); RB = env("RB", 1)
    e("s_and_b32 s50, s4, 3")
    e(f"s_mul_i32 s50, s50, {RA}")
    e("s_lshr_b32 s51, s4, 2")
    e(f"s_mul_i32 s51, s51, {RB}")
    e("s_add_u32 s50, s50, s51")
    e("s_mul_i32 s51, s50, 205")
    e("s_lshr_b32 s51, s51, 11")
    e("s_mul_i32 s51, s51, 10")
    e("s_sub_u32 s50, s50, s51")
    e("s_lshl_b32 s51, s50, 19")
    e("s_lshl_b32 s52, s50, 7")
    def issue_W(i, n):
        e(f"s_add_u32 m0, s42, {RBASE + (i % NS)*SLOT + n*1024}")
        e(f"s_add_u32 s49, s51, {4*n*8192}")
        v = VWD if n < 2 else VWD2
        L.vmem(f"buffer_load_dwordx4 v{v}, s[{SW}:{SW+3}], s49 offen lds", f"W{i}")
        if n == 3:
            e("s_add_u32 s51, s51, 262144")
            e("s_cmp_ge_u32 s51, 5242880")
            e("s_cselect_b32 s51, 0, s51")
    def issue_X(d, jj):
        e(f"s_add_u32 m0, s43, {XBASE + (d % 3)*XSLOT + jj*1024}")
        e(f"s_add_u32 s49, s52, {jj*10240}")
        v = VXD if jj % 2 == 0 else VXD2
        L.vmem(f"buffer_load_dwordx4 v{v}, s[{SX}:{SX+3}], s49 offen lds", f"X{d}")
        if jj == 11:
            e("s_add_u32 s52, s52, 128")
            e("s_cmp_ge_u32 s52, 1280")
            e("s_cselect_b32 s52, 0, s52")
    for n in range(4): issue_W(0, n)
    for jj in range(12): issue_X(0, jj)
    for i in range(1, PD):
        for n in range(4): issue_W(i, n)
        if i == 1:
            for jj in range(12): issue_X(1, jj)
    for i in range(NIT):
        L.wait_vm({f"W{i}", f"X{i//2}"})
        e("s_barrier")
        if i + PD < NIT:
            for n in range(4): issue_W(i + PD, n)
        if i // 2 + 2 < NIT // 2:
            for n in range(6): issue_X(i // 2 + 2, 6 * (i % 2) + n)
    e("s_barrier")
    L.vm = []
    phase2_loader(L)
    A.lines += L.lines
    A.label("L_kv")
    L = Asm(); e = L.e
    VKD, VVA, VVB = 4, 5, 6
    e("s_cmp_lg_u32 s2, 0")
    e("s_cbranch_scc1 L_nonp")
    e("s_cmp_lg_u32 s55, 6")
    e("s_cbranch_scc1 L_nonp")
    e("s_memrealtime s[96:97]")
    e("s_waitcnt lgkmcnt(0)")
    e("s_or_b32 s96, s96, 1")
    e("v_mov_b32 v14, s96")
    e("v_mov_b32 v15, s97")
    e("v_mov_b32 v16, 0")
    e(f"buffer_store_dwordx2 v[14:15], v16, s[{SD}:{SD+3}], 0 offen sc0 sc1")
    e("s_waitcnt vmcnt(0)")
    e("L_nonp:")
    e("s_and_b32 s53, s38, 1")
    e("s_mul_i32 s44, s53, 24576")
    e("s_lshl_b32 s54, s53, 13")
    e("s_mul_i32 s52, s53, 786432")
    e(f"v_xor_b32 v{T0}, v{VI}, v{VG}")
    e(f"v_lshlrev_b32 v{T0}, 4, v{T0}")
    e(f"v_lshlrev_b32 v{T1}, 8, v{VG}")
    e(f"v_add_u32 v{VKD}, v{T0}, v{T1}")
    for m in range(1, 4): e(f"v_xor_b32 v{7+m}, {m*64}, v{VKD}")
    e(f"v_lshlrev_b32 v{T0}, 1, v{VG}")
    e(f"v_xor_b32 v{T0}, v{T0}, v{VI}")
    e(f"v_lshlrev_b32 v{T0}, 4, v{T0}")
    e(f"v_add_u32 v{VVA}, v{T0}, v{T1}")
    e(f"v_xor_b32 v{VVB}, 128, v{VVA}")
    def issue_K(jj, b):
        q, m = jj // 4, jj % 4
        e(f"s_add_u32 m0, s44, {b*12288 + q*4096}")
        e(f"s_add_u32 s49, s52, {b*393216 + q*4096}")
        v = VKD if m == 0 else 7 + m
        L.vmem(f"buffer_load_dwordx4 v{v}, s[{SK}:{SK+3}], s49 offen offset:{m*1024} lds", "K")
    def issue_V(jj, b):
        q, m = jj // 4, jj % 4
        e(f"s_add_u32 m0, s54, {VB[q] + b*4096}")
        e(f"s_add_u32 s49, s52, {b*393216 + q*4096}")
        v = VVA if (jj % 2 == 0) else VVB
        L.vmem(f"buffer_load_dwordx4 v{v}, s[{SV}:{SV+3}], s49 offen offset:{m*1024} lds", "V")
    K0 = env("K0", 0); KN = env("KN", 12)
    e("s_and_b32 s40, s3, 3")
    e("s_mul_i32 s40, s40, 1310720")
    e(f"s_add_u32 s{ST}, s56, s40")
    e(f"s_addc_u32 s{ST+1}, s57, 0")
    e(f"s_mov_b32 s{ST+2}, 1310720")
    e(f"s_mov_b32 s{ST+3}, 0x00020000")
    e("s_lshl_b32 s40, s4, 1")
    e("s_add_u32 s40, s40, s53")
    e("s_mul_i32 s51, s40, 5120")
    e(f"v_min_u32 v12, 39, v0")
    e(f"v_lshlrev_b32 v12, 7, v12")
    for i in range(NIT):
        if i == NIT - 1: L.wait_vm({"K"})
        e("s_barrier")
        for qd in range(4):
            if TAI[qd] == i and "notA" not in OPT:
                e(f"s_add_u32 s49, s51, {qd*327680}")
                L.vmem(f"buffer_load_dword v13, v12, s[{ST}:{ST+3}], s49 offen", "T")
        for p in range(12):
            if K0 + (p * KN) // 12 == i:
                for b in range(2): issue_K(p, b)
        if i in (16, 17, 18):
            for b in range(2):
                for jj in range(4): issue_V({16: 0, 17: 8, 18: 4}[i] + jj, b)
    get_nonce(e, "kv")
    e("s_barrier")
    L.vm = []
    phase2_poller(L)
    A.lines += L.lines
    e = A.e
    A.label("L_compute")
    e("s_mul_i32 s43, s38, 6144")
    e("s_mul_i32 s44, s38, 12288")
    e("s_lshl_b32 s54, s38, 12")
    e("s_add_u32 s41, s39, s38")
    e("s_mul_i32 s40, s3, 48")
    e("s_mul_i32 s41, s41, 3")
    e("s_add_u32 s40, s40, s41")
    e("s_lshl_b32 s40, s40, 5")
    e("s_and_b32 s41, s7, 7")
    e("s_lshl_b32 s41, s41, 2")
    e("s_add_u32 s40, s40, s41")
    e("s_lshl_b32 s40, s40, 10")
    e(f"s_add_u32 s{SO}, s36, s40")
    e(f"s_addc_u32 s{SO+1}, s37, 0")
    e(f"s_sub_u32 s{SO+2}, {OBYTES}, s40")
    e(f"s_mov_b32 s{SO+3}, 0x00020000")
    e("s_mov_b32 s47, 32768")
    e("s_mov_b32 s48, 65536")
    e(f"v_lshrrev_b32 v{T0}, 1, v{VI}")
    e(f"v_xor_b32 v{T0}, v{T0}, v{VG}")
    e(f"v_lshlrev_b32 v{T0}, 4, v{T0}")
    e(f"v_lshlrev_b32 v{T1}, 7, v{VI}")
    e(f"v_add_u32 v{T0}, v{T0}, v{T1}")
    e(f"s_add_u32 s40, s43, {XBASE}")
    e(f"v_add_u32 v{VXR}, s40, v{T0}")
    e(f"v_xor_b32 v{VXR+1}, 64, v{VXR}")
    e(f"v_xor_b32 v{T0}, v{VI}, v{VG}")
    e(f"v_lshlrev_b32 v{T0}, 4, v{T0}")
    e(f"v_lshlrev_b32 v{T1}, 8, v{VI}")
    e(f"v_add_u32 v{T0}, v{T0}, v{T1}")
    e(f"v_add_u32 v{VKR}, s44, v{T0}")
    e(f"v_lshlrev_b32 v{T0}, 3, v{VG}")
    e(f"v_add_u32 v{T0}, v{T0}, v{VR}")
    e(f"v_lshlrev_b32 v{T0}, 8, v{T0}")
    e(f"v_and_b32 v{T1}, 1, v{VR}")
    e(f"v_xor_b32 v{T1}, v{T1}, v{VC}")
    e(f"v_lshlrev_b32 v{T1}, 4, v{T1}")
    e(f"v_add_u32 v{T0}, v{T0}, v{T1}")
    e(f"v_and_b32 v{T1}, 1, v{VC}")
    e(f"v_lshlrev_b32 v{T1}, 3, v{T1}")
    e(f"v_add_u32 v{T0}, v{T0}, v{T1}")
    e(f"v_add_u32 v{T0}, {RBASE}, v{T0}")
    e(f"v_and_b32 v{T1}, 1, v{VG}")
    e(f"v_lshlrev_b32 v{T1}, 1, v{T1}")
    e(f"v_lshrrev_b32 v{T2}, 1, v{VR}")
    e(f"v_or_b32 v{T1}, v{T1}, v{T2}")
    for s_ in range(4):
        e(f"v_xor_b32 v{T2}, {s_}, v{T1}")
        e(f"v_lshlrev_b32 v{T2}, 6, v{T2}")
        e(f"v_add_u32 v{TRA+2*s_}, v{T0}, v{T2}")
        e(f"v_xor_b32 v{TRA+2*s_+1}, 8, v{TRA+2*s_}")
    phase2_srds(e)
    def reads(i):
        Fb = F[i % 2]; Xb = XF[i % 2]
        so = (i % NS) * SLOT
        Lr = []
        for tq in range(3):
            Lr.append(f"ds_read_b128 {ar(Xb+tq*4,4)}, v{VXR + i % 2} offset:{((i//2) % 3)*XSLOT + tq*2048}")
        for t in range(8):
            for hh in range(2):
                Lr.append(f"ds_read_b64_tr_b16 {ar(Fb + t*4 + hh*2, 2)}, v{TRA+t} offset:{so + hh*1024}")
        return Lr
    def mfma_q1(i, t, tq):
        Fb = F[i % 2]; Xb = XF[i % 2]
        a = ACC + (t * 3 + tq) * 4
        c = "0" if i == 0 else vr(a, 4)
        e(f"v_mfma_f32_16x16x32_bf16 {vr(a,4)}, {ar(Fb+t*4,4)}, {ar(Xb+tq*4,4)}, {c}")
    for i in range(NIT):
        A.c(f"---- iteration {i}")
        if i == 0: A.stamp()
        e("s_barrier")
        if i % 4 == 0: A.stamp()
        R = reads(i)
        for t in range(8):
            for tq in range(3):
                if i > 0: mfma_q1(i - 1, t, tq)
                if R: e(R.pop(0))
        e("s_waitcnt lgkmcnt(0)")
    for t in range(8):
        for tq in range(3): mfma_q1(NIT - 1, t, tq)
    e(f"v_mov_b32 v{T0}, 0")
    e(f"buffer_load_dwordx2 v[{VN}:{VN+1}], v{T0}, s[{SD}:{SD+3}], 0 offen sc0 sc1")
    KA = 0
    for s_ in range(1, 4): e(f"v_xor_b32 v{T0+s_-1}, {s_*64}, v{VKR}")
    for tk in range(3):
        for s_ in range(4):
            va = VKR if s_ == 0 else T0 + s_ - 1
            e(f"ds_read_b128 {ar(KA+(tk*4+s_)*4,4)}, v{va} offset:{tk*4096}")
    e("s_mov_b32 s50, 0xffff0000")
    e("s_mov_b32 s51, 0xffff0000")
    e("s_mov_b32 s52, 0x3e0293ee")
    def QP(tq, s_): return ACC + ((2 * s_) * 3 + tq) * 4
    for s_ in range(4):
        for tq in range(3):
            a = QP(tq, s_); b = ACC + ((2 * s_ + 1) * 3 + tq) * 4
            e(f"v_cvt_pk_bf16_f32 v{a}, v{a}, v{a+1}")
            e(f"v_cvt_pk_bf16_f32 v{a+1}, v{a+2}, v{a+3}")
            e(f"v_cvt_pk_bf16_f32 v{a+2}, v{b}, v{b+1}")
            e(f"v_cvt_pk_bf16_f32 v{a+3}, v{b+2}, v{b+3}")
    e("s_mov_b64 exec, s[50:51]")
    for s_ in range(4):
        for tq in range(3):
            d = QP(tq, s_)
            e(f"v_swap_b32 v{d}, v{d+2}")
            e(f"v_swap_b32 v{d+1}, v{d+3}")
    e("s_mov_b64 exec, -1")
    e(f"v_lshlrev_b32 v{T0}, 2, v{VG}")
    e(f"v_add_u32 v{T0}, v{T0}, v{VR}")
    e(f"v_and_b32 v{T1}, 7, v{T0}")
    e(f"v_lshlrev_b32 v{T0}, 8, v{T0}")
    e(f"v_lshrrev_b32 v{T2}, 1, v{VC}")
    e(f"v_lshlrev_b32 v{T2}, 4, v{T2}")
    e(f"v_add_u32 v{T0}, v{T0}, v{T2}")
    e(f"v_and_b32 v{T2}, 1, v{VC}")
    e(f"v_lshlrev_b32 v{T2}, 3, v{T2}")
    e(f"v_add_u32 v118, v{T0}, v{T2}")
    e(f"v_mov_b32 v119, v{T1}")
    e(f"s_add_u32 s40, s54, {VB[0]}")
    e(f"v_add_u32 v{T0}, s40, v118")
    A.stamp()
    e("s_waitcnt lgkmcnt(0)")
    STB = [12, 36, 60]
    PPB = [0, 6, 24]
    def st_mfma(tq):
        Lm = []
        for tk in range(3):
            d = STB[tq] + tk * 4
            for s_ in range(4):
                c = "0" if s_ == 0 else vr(d, 4)
                Lm.append(f"v_mfma_f32_16x16x32_bf16 {vr(d,4)}, {ar(KA+(tk*4+s_)*4,4)}, {vr(QP(tq,s_),4)}, {c}")
        return Lm
    def softmax(tq, pp):
        b = STB[tq]
        m = 120 + tq * 4; m2 = m + 1; sm = m + 2; sm2 = m + 3
        Lv = []
        x = Lv.append
        x(f"v_max3_f32 v{m}, v{b}, v{b+1}, v{b+2}")
        x(f"v_max3_f32 v{m2}, v{b+3}, v{b+4}, v{b+5}")
        x(f"v_max3_f32 v{m}, v{m}, v{b+6}, v{b+7}")
        x(f"v_max3_f32 v{m2}, v{m2}, v{b+8}, v{b+9}")
        x(f"v_max3_f32 v{m}, v{m}, v{b+10}, v{b+11}")
        x(f"v_max_f32 v{m}, v{m}, v{m2}")
        x(f"v_mov_b32 v{m2}, v{m}")
        x("s_nop 1")
        x(f"v_permlane16_swap_b32 v{m}, v{m2}")
        x(f"v_max_f32 v{m}, v{m}, v{m2}")
        x(f"v_mov_b32 v{m2}, v{m}")
        x("s_nop 1")
        x(f"v_permlane32_swap_b32 v{m}, v{m2}")
        x(f"v_max_f32 v{m}, v{m}, v{m2}")
        x(f"v_mul_f32 v{m}, s52, v{m}")
        for r in range(12): x(f"v_fma_f32 v{b+r}, v{b+r}, s52, -v{m}")
        for r in range(12): x(f"v_exp_f32 v{b+r}, v{b+r}")
        x("s_nop 0")
        x(f"v_add_f32 v{sm}, v{b}, v{b+1}")
        x(f"v_add_f32 v{sm2}, v{b+2}, v{b+3}")
        for r in range(4, 12, 2):
            x(f"v_add_f32 v{sm}, v{sm}, v{b+r}")
            x(f"v_add_f32 v{sm2}, v{sm2}, v{b+r+1}")
        x(f"v_add_f32 v{sm}, v{sm}, v{sm2}")
        x(f"v_mov_b32 v{sm2}, v{sm}")
        x("s_nop 1")
        x(f"v_permlane16_swap_b32 v{sm}, v{sm2}")
        x(f"v_add_f32 v{sm}, v{sm}, v{sm2}")
        x(f"v_mov_b32 v{sm2}, v{sm}")
        x("s_nop 1")
        x(f"v_permlane32_swap_b32 v{sm}, v{sm2}")
        x(f"v_add_f32 v{sm}, v{sm}, v{sm2}")
        x(f"v_rcp_f32 v{sm}, v{sm}")
        x("s_nop 0")
        for r in range(12): x(f"v_mul_f32 v{b+r}, v{b+r}, v{sm}")
        for k in range(6): x(f"v_cvt_pk_bf16_f32 v{pp+k}, v{b+2*k}, v{b+2*k+1}")
        return Lv
    for m_ in st_mfma(0): e(m_)
    vaddr = []
    for t in range(8):
        vaddr += [f"v_xor_b32 v{T2}, {t}, v{T1}", f"v_lshlrev_b32 v{T2}, 5, v{T2}", f"v_add_u32 v{TRA+t}, v{T0}, v{T2}"]
    M1 = st_mfma(1)
    for k, m_ in enumerate(M1):
        e(m_)
        for _ in range(2): e(vaddr.pop(0))
    M2 = st_mfma(2)
    S0 = softmax(0, 84)
    k = 0
    for ins in S0:
        e(ins); k += 1
        if k % 3 == 0 and M2: e(M2.pop(0))
    assert not M2
    PPB = [84, 90, 0]
    for ins in softmax(1, 90): e(ins)
    for ins in softmax(2, 0): e(ins)
    A.stamp()
    e("s_barrier")
    A.stamp()
    VF = 48
    def v_reads(t):
        for tk in range(3):
            e(f"ds_read_b64_tr_b16 {ar(VF+(t%6)*6+tk*2,2)}, v{TRA+t} offset:{VB[tk]-VB[0]}")
    OR_ = [36, 60]; OP_ = [12, 24]
    for t in range(4): v_reads(t)
    def pv32(t):
        f = VF + (t % 6) * 6
        for tq in range(3):
            o = OR_[(t // 2) % 2] + ((t % 2) * 3 + tq) * 4
            e(f"v_mfma_f32_16x16x32_bf16 {vr(o,4)}, {ar(f,4)}, {vr(PPB[tq],4)}, 0")
    def pv16(t):
        f = VF + (t % 6) * 6
        for tq in range(3):
            o = OR_[(t // 2) % 2] + ((t % 2) * 3 + tq) * 4
            e(f"v_mfma_f32_16x16x16_bf16 {vr(o,4)}, {ar(f+4,2)}, {vr(PPB[tq]+4,2)}, {vr(o,4)}")
    def conv_store(q):
        R = OR_[q % 2]; P = OP_[q % 2]
        for tq in range(3):
            d = P + tq * 4
            for u in range(2):
                o = R + (u * 3 + tq) * 4
                e(f"v_cvt_pk_bf16_f32 v{d+2*u}, v{o}, v{o+1}")
                e(f"v_cvt_pk_bf16_f32 v{d+2*u+1}, v{o+2}, v{o+3}")
            so = ["0", "s47", "s48"][tq]
            e(f"buffer_store_dwordx4 {vr(d,4)}, v{VL16}, s[{SO}:{SO+3}], {so} offen offset:{q*1024} sc1")
    for q in range(4):
        t0, t1 = 2 * q, 2 * q + 1
        npend = (min(2 * q + 3, 7) - t1) * 3
        e(f"s_waitcnt lgkmcnt({npend})")
        pv32(t0); pv32(t1)
        for t in (2 * q + 4, 2 * q + 5):
            if t < 8: v_reads(t)
        if q > 0: conv_store(q - 1)
        else: e("s_nop 5")
        pv16(t0); pv16(t1)
    e("s_nop 7")
    conv_store(3)
    A.stamp()
    TR = 96; VBR = 104
    e("s_lshr_b32 s40, s38, 1")
    e("s_lshl_b32 s40, s40, 2")
    e(f"v_xor_b32 v{T1}, s40, v119")
    for tn in range(4):
        e(f"v_xor_b32 v{T2}, {tn}, v{T1}")
        e(f"v_lshlrev_b32 v{T2}, 5, v{T2}")
        e(f"v_add_u32 v{TR+tn}, v118, v{T2}")
    e("s_and_b32 s40, s38, 1")
    e("s_lshl_b32 s40, s40, 13")
    e(f"s_add_u32 s40, s40, {BBASE}")
    e(f"v_add_u32 v{VBR}, s40, v{VL16}")
    e("s_waitcnt vmcnt(0)")
    e("s_barrier")
    e(f"v_readfirstlane_b32 s44, v{VN}")
    e("s_cmp_lg_u32 s44, 0")
    e("s_cbranch_scc1 L_nonce_ok")
    get_nonce(e, "c")
    A.label("L_nonce_ok")
    A.stamp()
    e("s_cmp_ge_u32 s4, 30")
    e("s_cbranch_scc1 L_fin")
    e("s_mul_i32 s40, s60, 327680")
    e("s_mul_i32 s41, s5, 1280")
    e("s_add_u32 s40, s40, s41")
    e("s_lshl_b32 s41, s61, 8")
    e("s_add_u32 s40, s40, s41")
    e(f"s_add_u32 s{SOUT}, s92, s40")
    e(f"s_addc_u32 s{SOUT+1}, s93, 0")
    e(f"s_sub_u32 s{SOUT+2}, 1966080, s40")
    e(f"s_mov_b32 s{SOUT+3}, 0x00020000")
    e("s_mul_i32 s63, s5, 30")
    e("s_add_u32 s63, s63, s4")
    e("s_lshl_b32 s40, s63, 18")
    e(f"s_add_u32 s40, s40, {PBASE}")
    e(f"s_add_u32 s{SP}, s36, s40")
    e(f"s_addc_u32 s{SP+1}, s37, 0")
    e(f"s_mov_b32 s{SP+2}, 262144")
    e(f"s_mov_b32 s{SP+3}, 0x00020000")
    e("s_barrier")
    A.stamp()
    e("s_barrier")
    AFr = [0, 16]; BFr = [32, 48]
    def reads2(n):
        i, sub = n >> 1, n & 1
        so = (i % NSL) * ASLOT
        Lr = []
        for tt in range(4):
            Lr.append(f"ds_read_b128 {ar(BFr[n%2]+tt*4,4)}, v{VBR} offset:{so + tt*2048 + sub*1024}")
        for tn in range(4):
            for hh in range(2):
                Lr.append(f"ds_read_b64_tr_b16 {ar(AFr[n%2]+tn*4+hh*2,2)}, v{TR+tn} offset:{so + sub*8192 + hh*4096}")
        return Lr
    def mfma2(n, tn, tt):
        a = ACC + (tn * 4 + tt) * 4
        c = "0" if n == 0 else vr(a, 4)
        e(f"v_mfma_f32_16x16x32_bf16 {vr(a,4)}, {ar(AFr[n%2]+tn*4,4)}, {ar(BFr[n%2]+tt*4,4)}, {c}")
    for n in range(2 * NIT2):
        if n % 2 == 0:
            A.c(f"---- p2 stage {n//2}")
            e("s_barrier")
            if n % 8 == 0: A.stamp()
        R = reads2(n)
        for tn in range(4):
            for tt in range(4):
                if n > 0: mfma2(n - 1, tn, tt)
                if R: e(R.pop(0))
        e("s_waitcnt lgkmcnt(0)")
    for tn in range(4):
        for tt in range(4): mfma2(2 * NIT2 - 1, tn, tt)
    A.stamp()
    BF = "bfp" in OPT
    e(f"s_lshl_b32 s40, s62, 14")
    e("s_lshl_b32 s41, s38, 12")
    e("s_add_u32 s40, s40, s41")
    e("s_nop 4")
    for tn in range(4):
        e(f"s_cmp_eq_u32 s62, {tn}")
        e(f"s_cbranch_scc1 L_skipst{tn}")
        e(f"s_add_u32 s42, s40, {tn*65536}")
        if BF:
            for tp in range(2):
                a = ACC + (tn * 4 + 2 * tp) * 4
                e(f"v_cvt_pk_bf16_f32 v{a}, v{a}, v{a+1}")
                e(f"v_cvt_pk_bf16_f32 v{a+1}, v{a+2}, v{a+3}")
                e(f"v_cvt_pk_bf16_f32 v{a+2}, v{a+4}, v{a+5}")
                e(f"v_cvt_pk_bf16_f32 v{a+3}, v{a+6}, v{a+7}")
                e(f"buffer_store_dwordx4 {vr(a,4)}, v{VL16}, s[{SP}:{SP+3}], s42 offen offset:{tp*1024} sc0 sc1")
        else:
            for tt in range(4):
                a = ACC + (tn * 4 + tt) * 4
                e(f"buffer_store_dwordx4 {vr(a,4)}, v{VL16}, s[{SP}:{SP+3}], s42 offen offset:{tt*1024} sc0 sc1")
        A.label(f"L_skipst{tn}")
    OWN = 64
    for tn in range(4):
        e(f"s_cmp_lg_u32 s62, {tn}")
        e(f"s_cbranch_scc1 L_skipmv{tn}")
        for r in range(16): e(f"v_mov_b32 v{OWN+r}, v{ACC+tn*16+r}")
        A.label(f"L_skipmv{tn}")
    e("s_lshl_b32 s43, s63, 2")
    e("s_add_u32 s43, s43, s38")
    e("s_lshl_b32 s43, s43, 7")
    e(f"s_add_u32 s43, s43, {F2BASE - F1BASE}")
    e("s_lshl_b32 s46, s62, 3")
    e(f"v_mov_b32 v{T2}, s46")
    e(f"v_and_b32 v{T0}, 3, v0") if False else None
    e(f"v_lshlrev_b32 v{T0}, 3, v{VC}")
    e("s_waitcnt vmcnt(0)")
    A.stamp()
    e("s_mov_b64 exec, 1")
    e(f"buffer_store_dwordx2 v[{VN}:{VN+1}], v{T2}, s[{SF}:{SF+3}], s43 offen sc0 sc1")
    e("s_mov_b64 exec, 15")
    e("s_mov_b32 s45, 0")
    A.label("L_poll2")
    e(f"buffer_load_dwordx2 v[80:81], v{T0}, s[{SF}:{SF+3}], s43 offen sc0 sc1")
    e("s_add_u32 s45, s45, 1")
    e("s_waitcnt vmcnt(0)")
    e(f"v_cmp_eq_u64 vcc, v[80:81], v[{VN}:{VN+1}]")
    e("s_cmp_ge_u32 s45, 0x100000")
    e("s_cbranch_scc1 L_poll2_d")
    e("s_cmp_eq_u64 vcc, 15")
    e("s_cbranch_scc0 L_poll2")
    A.label("L_poll2_d")
    e("s_mov_b64 exec, -1")
    A.stamp()
    e("s_lshl_b32 s40, s62, 16")
    e("s_add_u32 s40, s40, s41")
    for d in range(1, 4):
        e(f"s_add_u32 s42, s62, {d}")
        e("s_and_b32 s42, s42, 3")
        e("s_lshl_b32 s42, s42, 14")
        e("s_add_u32 s42, s42, s40")
        for tt in range(2 if BF else 4):
            e(f"buffer_load_dwordx4 {vr(ACC+((d-1)*4+tt)*4,4)}, v{VL16}, s[{SP}:{SP+3}], s42 offen offset:{tt*1024} sc0 sc1")
    e(f"v_mul_u32_u24 v{T0}, 2560, v{VI}")
    e(f"v_lshlrev_b32 v{T1}, 3, v{VG}")
    e(f"v_add_u32 v{T0}, v{T0}, v{T1}")
    e("s_and_b32 s40, s38, 1")
    e("s_mul_i32 s40, s40, 163840")
    e("s_lshr_b32 s42, s38, 1")
    e("s_lshl_b32 s42, s42, 7")
    e("s_add_u32 s40, s40, s42")
    e("s_lshl_b32 s42, s62, 5")
    e("s_add_u32 s40, s40, s42")
    e("s_waitcnt vmcnt(0)")
    for tt in range(4):
        o = OWN + tt * 4
        for d in range(3):
            if BF:
                src = ACC + (d * 4 + (tt >> 1)) * 4 + (tt & 1) * 2
                for h in range(2):
                    e(f"v_lshlrev_b32 v{T1}, 16, v{src+h}")
                    e(f"v_and_b32 v{T2}, 0xffff0000, v{src+h}")
                    e(f"v_add_f32 v{o+2*h}, v{o+2*h}, v{T1}")
                    e(f"v_add_f32 v{o+2*h+1}, v{o+2*h+1}, v{T2}")
            else:
                for r in range(4): e(f"v_add_f32 v{o+r}, v{o+r}, v{ACC+(d*4+tt)*4+r}")
        e(f"v_cvt_pk_bf16_f32 v{o}, v{o}, v{o+1}")
        e(f"v_cvt_pk_bf16_f32 v{o+1}, v{o+2}, v{o+3}")
        e(f"s_add_u32 s42, s40, {tt*40960}")
        e(f"buffer_store_dwordx2 {vr(o,2)}, v{T0}, s[{SOUT}:{SOUT+3}], s42 offen{' sc1' if 'scOut' in OPT else ''}")
    if DIAG:
        e("s_waitcnt vmcnt(0)")
        A.stamp()
    A.label("L_fin")
    if DIAG:
        e("s_lshl_b32 s40, s2, 2")
        e("s_add_u32 s40, s40, s38")
        e("s_lshl_b32 s40, s40, 8")
        e("s_add_u32 s40, s40, 0x8000000")
        e(f"s_add_u32 s{SP}, s36, s40")
        e(f"s_addc_u32 s{SP+1}, s37, 0")
        e(f"s_mov_b32 s{SP+2}, 256")
        e(f"s_mov_b32 s{SP+3}, 0x00020000")
        e(f"v_lshrrev_b32 v{T0}, 2, v{VL16}")
        e(f"buffer_store_dword v135, v{T0}, s[{SP}:{SP+3}], 0 offen")
    A.label("L_done")
    e("s_endpgm")
    return A.text(), NV, NA

def main():
    body, nv, na = gen()
    out = []
    out.append("; @launch grid=(256,1,1) block=(512,1,1) lds=163840")
    out.append('.amdgcn_target "amdgcn-amd-amdhsa--gfx950"')
    out.append(".text")
    name = NAME + "_kernel"
    out.append(f".globl {name}\n.p2align 8\n.type {name},@function\n{name}:")
    out.append(body)
    out.append('.section .rodata,"a"\n.p2align 6')
    out.append(f""".amdhsa_kernel {name}
  .amdhsa_next_free_vgpr {nv + na}
  .amdhsa_next_free_sgpr 100
  .amdhsa_accum_offset {nv}
  .amdhsa_group_segment_fixed_size 0
  .amdhsa_kernarg_size 104
  .amdhsa_user_sgpr_count 2
  .amdhsa_user_sgpr_kernarg_segment_ptr 1
  .amdhsa_system_sgpr_workgroup_id_x 1
.end_amdhsa_kernel
""")
    path = sys.argv[1] if len(sys.argv) > 1 else f"cdna_kernels/{NAME}.s"
    open(path, "w").write("\n".join(out))
main()
```

```python
import sys, os
DIAG = int(os.environ.get("DIAG", "0"))
EXP = os.environ.get("EXP", "").split(",")
OPT = os.environ.get("OPT", "").split(",")
NAME = "concat_heads__mha_block_cached__gqa_block_cached__near_ridge"
def env(k, d): return int(os.environ.get(k, str(d)))

class Asm:
    def __init__(self):
        self.lines = []; self.vm = []; self.nst = 0
    def e(self, s): self.lines.append("    " + s)
    def label(self, s): self.lines.append(s + ":")
    def c(self, s): self.lines.append("    ; " + s)
    def vmem(self, s, tag):
        self.e(s); self.vm.append(tag)
    def wait_vm(self, tags):
        last = -1
        for i, t in enumerate(self.vm):
            if t in tags: last = i
        if last < 0: return
        n = len(self.vm) - 1 - last
        assert n <= 63, n
        self.e(f"s_waitcnt vmcnt({n})")
        self.vm = self.vm[last + 1:]
    def stamp(self):
        if not DIAG: return
        n = self.nst; self.nst += 1
        assert n < 32
        self.e("s_memtime s[98:99]")
        self.e("s_waitcnt lgkmcnt(0)")
        self.e(f"v_writelane_b32 v105, s98, {n}")
    def text(self): return "\n".join(self.lines) + "\n"

def vr(b, n=1): return f"v{b}" if n == 1 else f"v[{b}:{b+n-1}]"
def ar(b, n=1): return f"a{b}" if n == 1 else f"a[{b}:{b+n-1}]"

OBYTES = 12582912
PBASE = 0x1000000
F1BASE = 0xF00000
F2BASE = 0xF10000

def gen():
    A = Asm(); e = A.e
    NS, NIT, PD = 8, 20, 7
    NXS = 4
    SLOT = 8192
    XBASE = 0; XSLOT = 24576
    RBASE = XBASE + NXS * XSLOT
    KBASE = XBASE + 2 * XSLOT
    VB = [RBASE + 4 * SLOT, RBASE + 6 * SLOT, RBASE]
    VB0 = RBASE
    ACC = 0
    TRA = 96; VXR = 132; VKR = 106; VL16 = 107
    VI, VG, VR, VC = 108, 109, 110, 111
    T0, T1, T2 = 112, 113, 114
    VN = 116
    NV = 136; NA = 88
    F = [0, 32]; XF = [64, 76]
    SX, SW, SK, SV, SO = 8, 12, 16, 20, 24
    SA, SB, SP, SF, SOUT, SD, ST = 64, 68, 72, 76, 80, 84, 88
    TAI = [int(x) for x in os.environ.get("TAI", "19,19,19,19").split(",")]
    NSL, PD2, NIT2 = 4, 3, 16
    ASLOT = 16384; BBASE = 65536
    e("s_cmp_ge_u32 s2, 256")
    e("s_cbranch_scc1 L_done")
    A.stamp()
    e("s_and_b32 s3, s2, 7")
    e("s_lshr_b32 s4, s2, 3")
    e("s_lshr_b32 s5, s3, 2")
    e("s_mul_i32 s6, s5, 40")
    e("s_load_dwordx4 s[28:31], s[0:1], s6")
    e("s_load_dwordx4 s[32:35], s[0:1], s6 offset:16")
    e("s_load_dwordx2 s[56:57], s[0:1], s6 offset:32")
    e("s_load_dwordx4 s[92:95], s[0:1], 80")
    e("s_load_dwordx2 s[36:37], s[0:1], 96")
    e(f"v_lshrrev_b32 v{T0}, 6, v0")
    e("s_and_b32 s7, s3, 3")
    e("s_lshl_b32 s7, s7, 3")
    e(f"v_readfirstlane_b32 s55, v{T0}")
    e("s_lshr_b32 s39, s4, 2")
    e("s_add_u32 s7, s7, s39")
    e("s_and_b32 s38, s55, 3")
    e("s_and_b32 s39, s4, 3")
    e("s_lshl_b32 s39, s39, 2")
    e("v_and_b32 v0, 63, v0")
    e(f"v_and_b32 v{VI}, 15, v0")
    e(f"v_lshrrev_b32 v{VG}, 4, v0")
    e(f"v_lshlrev_b32 v{VL16}, 4, v0")
    e(f"v_bfe_u32 v{VR}, v0, 2, 2")
    e(f"v_and_b32 v{VC}, 3, v0")
    e("s_waitcnt lgkmcnt(0)")
    e("s_mul_i32 s40, s39, 61440")
    e(f"s_add_u32 s{SX}, s28, s40")
    e(f"s_addc_u32 s{SX+1}, s29, 0")
    e(f"s_mov_b32 s{SX+2}, 245760")
    e(f"s_mov_b32 s{SX+3}, 0x00020000")
    e("s_lshl_b32 s40, s7, 8")
    e(f"s_add_u32 s{SW}, s34, s40")
    e(f"s_addc_u32 s{SW+1}, s35, 0")
    e(f"s_sub_u32 s{SW+2}, {640*8192}, s40")
    e(f"s_mov_b32 s{SW+3}, 0x00020000")
    e("s_cmp_lt_u32 s55, 4")
    e("s_cbranch_scc1 L_srd_rest")
    e("s_cmp_lt_u32 s55, 6")
    e("s_cbranch_scc1 L_wx")
    A.label("L_srd_rest")
    e("s_lshl_b32 s40, s39, 5")
    e("s_add_u32 s40, s40, s7")
    e("s_mul_i32 s40, s40, 12288")
    e(f"s_add_u32 s{SK}, s30, s40")
    e(f"s_addc_u32 s{SK+1}, s31, 0")
    e(f"s_mov_b32 s{SK+2}, {3*393216 + 12288}")
    e(f"s_mov_b32 s{SK+3}, 0x00020000")
    e(f"s_add_u32 s{SV}, s32, s40")
    e(f"s_addc_u32 s{SV+1}, s33, 0")
    e(f"s_mov_b32 s{SV+2}, {3*393216 + 12288}")
    e(f"s_mov_b32 s{SV+3}, 0x00020000")
    e(f"s_mov_b32 s{SD}, s94")
    e(f"s_mov_b32 s{SD+1}, s95")
    e(f"s_mov_b32 s{SD+2}, 256")
    e(f"s_mov_b32 s{SD+3}, 0x00020000")
    e("s_cmp_lt_u32 s55, 4")
    e("s_cbranch_scc1 L_compute")
    e("s_branch L_kv")

    def phase2_srds(e):
        e("s_mul_i32 s60, s4, 52")
        e("s_lshr_b32 s60, s60, 8")
        e("s_mul_i32 s61, s60, 5")
        e("s_sub_u32 s61, s4, s61")
        e("s_and_b32 s62, s3, 3")
        e(f"s_add_u32 s{SF}, s36, {F1BASE}")
        e(f"s_addc_u32 s{SF+1}, s37, 0")
        e(f"s_mov_b32 s{SF+2}, 0x20000")
        e(f"s_mov_b32 s{SF+3}, 0x00020000")
    def get_nonce(e, lbl):
        e(f"v_mov_b32 v{T0}, 0")
        e("s_mov_b32 s45, 0")
        A_label = f"L_nonce_{lbl}"
        e(f"{A_label}:")
        e(f"buffer_load_dwordx2 v[{VN}:{VN+1}], v{T0}, s[{SD}:{SD+3}], 0 offen sc0 sc1")
        e("s_add_u32 s45, s45, 1")
        e("s_waitcnt vmcnt(0)")
        e(f"v_readfirstlane_b32 s44, v{VN}")
        e("s_cmp_ge_u32 s45, 0x100000")
        e(f"s_cbranch_scc1 {A_label}_d")
        e("s_cmp_eq_u32 s44, 0")
        e(f"s_cbranch_scc1 {A_label}")
        e(f"{A_label}_d:")

    def publish(e):
        e("s_lshl_b32 s40, s3, 13")
        e("s_lshl_b32 s41, s4, 3")
        e("v_lshlrev_b32 v8, 8, v0")
        e("v_add_u32 v8, s41, v8")
        e("s_mov_b32 exec_hi, 0")
        e(f"buffer_store_dwordx2 v[{VN}:{VN+1}], v8, s[{SF}:{SF+3}], s40 offen sc0 sc1")
    def phase2_loader(L):
        e = L.e
        VAD, VAD2 = 1, 2
        e("s_cmp_ge_u32 s4, 30")
        e("s_cbranch_scc1 L_done")
        phase2_srds(e)
        e("s_mul_i32 s40, s62, 1310720")
        e("s_lshl_b32 s41, s61, 8")
        e("s_add_u32 s40, s40, s41")
        e(f"s_add_u32 s{SA}, s56, s40")
        e(f"s_addc_u32 s{SA+1}, s57, 0")
        e(f"s_sub_u32 s{SA+2}, 5242880, s40")
        e(f"s_mov_b32 s{SA+3}, 0x00020000")
        e("s_mul_i32 s40, s3, 48")
        e("s_lshl_b32 s41, s60, 3")
        e("s_add_u32 s40, s40, s41")
        e("s_lshl_b32 s40, s40, 15")
        e(f"s_add_u32 s{SB}, s36, s40")
        e(f"s_addc_u32 s{SB+1}, s37, 0")
        e(f"s_sub_u32 s{SB+2}, {OBYTES}, s40")
        e(f"s_mov_b32 s{SB+3}, 0x00020000")
        e(f"v_lshlrev_b32 v{T0}, 1, v{VG}")
        e(f"v_xor_b32 v{T0}, v{T0}, v{VI}")
        e(f"v_lshlrev_b32 v{T0}, 4, v{T0}")
        e(f"v_mul_u32_u24 v{T1}, 1280, v{VG}")
        e(f"v_add_u32 v{VAD}, v{T0}, v{T1}")
        e(f"v_xor_b32 v{VAD2}, 128, v{VAD}")
        e("s_lshl_b32 s42, s38, 13")
        e("s_mul_i32 s43, s38, 40960")
        e("s_lshl_b32 s46, s38, 17")
        def issueA(i):
            for n in range(8):
                e(f"s_add_u32 m0, s42, {(i % NSL)*ASLOT + n*1024}")
                e(f"s_add_u32 s47, s43, {(64*i + 4*n)*1280}")
                v = VAD if n % 2 == 0 else VAD2
                L.vmem(f"buffer_load_dwordx4 v{v}, s[{SA}:{SA+3}], s47 offen lds", f"S{i}")
        def issueB(i):
            for m in (0, 2, 4, 6, 1, 3, 5, 7):
                e(f"s_add_u32 m0, s42, {BBASE + (i % NSL)*ASLOT + m*1024}")
                e(f"s_add_u32 s47, s46, {(m >> 1)*32768 + (2*i + (m & 1))*1024}")
                L.vmem(f"buffer_load_dwordx4 v{VL16}, s[{SB}:{SB+3}], s47 offen sc1 lds", f"S{i}")
        if "lateA" not in OPT:
            for i in range(PD2): issueA(i)
        e("s_barrier")
        if "lateA" in OPT:
            for i in range(PD2): issueA(i)
        e("s_barrier")
        issueB(0); issueB(1)
        e("s_barrier")
        issueB(2)
        for i in range(NIT2):
            L.wait_vm({f"S{i}"})
            e("s_barrier")
            if i + PD2 < NIT2:
                issueB(i + PD2); issueA(i + PD2)
        e("s_endpgm")
    def phase2_poller(L):
        e = L.e
        phase2_srds(e)
        e("s_barrier")
        e("s_cmp_eq_u32 s55, 6")
        e("s_cbranch_scc1 L_pub")
        for qd in range(4):
            if TAI[qd] >= 20:
                e(f"s_add_u32 s49, s51, {qd*327680}")
                e(f"buffer_load_dword v13, v12, s[{ST}:{ST+3}], s49 offen")
                e(f"s_sub_u32 s49, s49, 5120")
                e(f"buffer_load_dword v13, v12, s[{ST}:{ST+3}], s49 offen")
        e("s_endpgm")
        e("L_pub:")
        publish(e)
        e("s_cmp_ge_u32 s4, 30")
        e("s_cbranch_scc1 L_done")
        e("s_lshl_b32 s41, s4, 8")
        e("s_add_u32 s40, s40, s41")
        e("v_lshlrev_b32 v9, 3, v0")
        e("s_mul_i32 s41, s60, 43")
        e("s_lshr_b32 s41, s41, 6")
        e("s_lshl_b32 s42, s60, 1")
        e("s_add_u32 s42, s42, 1")
        e("s_mul_i32 s42, s42, 43")
        e("s_lshr_b32 s42, s42, 7")
        e("s_lshl_b32 s41, 1, s41")
        e("s_lshl_b32 s42, 1, s42")
        e("s_or_b32 s50, s41, s42")
        e("s_mov_b32 s51, 0")
        e("s_mov_b32 s45, 0")
        e("s_mov_b32 s54, 0x11111111")
        e("s_not_b32 s49, s50")
        e("s_and_b32 s49, s49, 15")
        e("s_mul_i32 s49, s49, 0x11111111")
        e(f"v_mov_b32 v10, {163840 - 64}")
        def pick(n):
            lbl = f"L_pick_{n}"
            e(f"{lbl}:")
            e("s_or_b32 s52, s51, s49")
            e("s_lshr_b32 s53, s52, 1")
            e("s_and_b32 s52, s52, s53")
            e("s_lshr_b32 s53, s52, 2")
            e("s_and_b32 s52, s52, s53")
            if "dyn" in OPT: e("s_and_b32 s52, s52, s54")
            else: e(f"s_and_b32 s52, s52, {1 << (4*n)}")
            e(f"s_cbranch_scc1 {lbl}_d")
            e(f"buffer_load_dwordx2 v[4:5], v9, s[{SF}:{SF+3}], s40 offen sc0 sc1")
            e("s_add_u32 s45, s45, 1")
            e("s_waitcnt vmcnt(0)")
            e(f"v_cmp_eq_u64 vcc, v[4:5], v[{VN}:{VN+1}]")
            e("s_mov_b32 s51, vcc_lo")
            e("s_cmp_lt_u32 s45, 0x100000")
            e(f"s_cbranch_scc1 {lbl}")
            e("s_mov_b32 s51, -1")
            e(f"s_branch {lbl}")
            e(f"{lbl}_d:")
        pick(0)
        e("s_barrier")
        pick(1)
        e("s_barrier")
        for i in range(NIT2):
            st = i + PD2
            if st < NIT2 and st % 2 == 0: pick(st >> 1)
            e("s_barrier")
        e("s_endpgm")

    A.label("L_wx")
    L = Asm(); e = L.e
    VXD, VXD2, VWD, VWD2 = 1, 2, 3, 4
    e("s_lshl_b32 s42, s38, 12")
    e("s_mul_i32 s43, s38, 12288")
    e(f"v_and_b32 v{T0}, 7, v0")
    e(f"v_xor_b32 v{T0}, v{T0}, v{VG}")
    e(f"v_lshlrev_b32 v{T0}, 4, v{T0}")
    e(f"v_lshrrev_b32 v{T1}, 3, v0")
    e(f"v_mul_u32_u24 v{T1}, 1280, v{T1}")
    e(f"v_add_u32 v{VXD}, v{T0}, v{T1}")
    e("s_mul_i32 s40, s38, 122880")
    e(f"v_add_u32 v{VXD}, s40, v{VXD}")
    e(f"v_xor_b32 v{VXD2}, 64, v{VXD}")
    e(f"v_lshrrev_b32 v{T0}, 1, v{VG}")
    e(f"v_lshlrev_b32 v{T0}, 2, v{T0}")
    e(f"v_and_b32 v{T1}, 1, v{VG}")
    e(f"v_or_b32 v{T0}, v{T0}, v{T1}")
    e(f"v_xor_b32 v{T0}, v{T0}, v{VI}")
    e(f"v_lshlrev_b32 v{T0}, 4, v{T0}")
    e(f"v_lshlrev_b32 v{T1}, 13, v{VG}")
    e(f"v_add_u32 v{VWD}, v{T0}, v{T1}")
    e("s_lshl_b32 s40, s38, 17")
    e(f"v_add_u32 v{VWD}, s40, v{VWD}")
    e(f"v_xor_b32 v{VWD2}, 128, v{VWD}")
    RA = env("RA", 3); RB = env("RB", 1)
    e("s_and_b32 s50, s4, 3")
    e(f"s_mul_i32 s50, s50, {RA}")
    e("s_lshr_b32 s51, s4, 2")
    e(f"s_mul_i32 s51, s51, {RB}")
    e("s_add_u32 s50, s50, s51")
    LS = env("LS", 0)
    NR = 10 - LS
    e(f"s_mul_i32 s51, s50, {(2048 + NR - 1) // NR}")
    e("s_lshr_b32 s51, s51, 11")
    e(f"s_mul_i32 s51, s51, {NR}")
    e("s_sub_u32 s50, s50, s51")
    e(f"s_add_u32 s50, s50, {LS}")
    e("s_lshl_b32 s51, s50, 19")
    e("s_lshl_b32 s52, s50, 7")
    def issue_W(i, n):
        e(f"s_add_u32 m0, s42, {RBASE + (i % NS)*SLOT + n*1024}")
        if i < 2 * LS: e(f"s_mov_b32 s49, {(i*32 + 4*n)*8192}")
        else: e(f"s_add_u32 s49, s51, {4*n*8192}")
        v = VWD if n < 2 else VWD2
        L.vmem(f"buffer_load_dwordx4 v{v}, s[{SW}:{SW+3}], s49 offen lds", f"W{i}")
        if n == 3 and i >= 2 * LS:
            e("s_add_u32 s51, s51, 262144")
            e("s_cmp_ge_u32 s51, 5242880")
            e(f"s_cselect_b32 s51, {LS*524288}, s51")
    def issue_X(d, jj):
        e(f"s_add_u32 m0, s43, {XBASE + (d % NXS)*XSLOT + jj*1024}")
        if d < LS: e(f"s_mov_b32 s49, {jj*10240 + d*128}")
        else: e(f"s_add_u32 s49, s52, {jj*10240}")
        v = VXD if jj % 2 == 0 else VXD2
        L.vmem(f"buffer_load_dwordx4 v{v}, s[{SX}:{SX+3}], s49 offen lds", f"X{d}")
        if jj == 11 and d >= LS:
            e("s_add_u32 s52, s52, 128")
            e("s_cmp_ge_u32 s52, 1280")
            e(f"s_cselect_b32 s52, {LS*128}, s52")
    for n in range(4): issue_W(0, n)
    for jj in range(12): issue_X(0, jj)
    for n in range(4): issue_W(1, n)
    for n in range(4): issue_W(2, n)
    for jj in range(12): issue_X(1, jj)
    for n in range(4): issue_W(3, n)
    for n in range(4): issue_W(4, n)
    for jj in range(12): issue_X(2, jj)
    nW = 5
    nXp = 36
    for i in range(NIT):
        L.wait_vm({f"W{i}", f"X{i//2}"})
        e("s_barrier")
        cnt = 0
        while nW < NIT and nW - NS < i and cnt < 2:
            for n in range(4): issue_W(nW, n)
            nW += 1; cnt += 1
        cnt = 0
        while nXp < 120 and 2 * (nXp // 12 - NXS) + 1 < i and cnt < 6:
            issue_X(nXp // 12, nXp % 12); nXp += 1; cnt += 1
    assert nW == NIT and nXp == 120
    e("s_barrier")
    L.vm = []
    phase2_loader(L)
    A.lines += L.lines
    A.label("L_kv")
    L = Asm(); e = L.e
    VKD, VVA, VVB = 4, 5, 6
    e("s_cmp_lg_u32 s2, 0")
    e("s_cbranch_scc1 L_nonp")
    e("s_cmp_lg_u32 s55, 6")
    e("s_cbranch_scc1 L_nonp")
    e("s_memrealtime s[96:97]")
    e("s_waitcnt lgkmcnt(0)")
    e("s_or_b32 s96, s96, 1")
    e("v_mov_b32 v14, s96")
    e("v_mov_b32 v15, s97")
    e("v_mov_b32 v16, 0")
    e(f"buffer_store_dwordx2 v[14:15], v16, s[{SD}:{SD+3}], 0 offen sc0 sc1")
    e("s_waitcnt vmcnt(0)")
    e("L_nonp:")
    e("s_and_b32 s53, s38, 1")
    e("s_mul_i32 s44, s53, 24576")
    e("s_lshl_b32 s54, s53, 13")
    e("s_mul_i32 s52, s53, 786432")
    e(f"v_xor_b32 v{T0}, v{VI}, v{VG}")
    e(f"v_lshlrev_b32 v{T0}, 4, v{T0}")
    e(f"v_lshlrev_b32 v{T1}, 8, v{VG}")
    e(f"v_add_u32 v{VKD}, v{T0}, v{T1}")
    e(f"v_lshlrev_b32 v{T0}, 1, v{VG}")
    e(f"v_xor_b32 v{T0}, v{T0}, v{VI}")
    e(f"v_lshlrev_b32 v{T0}, 4, v{T0}")
    e(f"v_add_u32 v{VVA}, v{T0}, v{T1}")
    e(f"v_xor_b32 v{VVB}, 128, v{VVA}")
    groups = [("v", 16 + 4 * g) for g in range(22)] + [("v", 120 + 4 * g) for g in range(3)] + [("a", 4 * g) for g in range(22)] + [("v", 8)]
    def grp(n):
        f, b = groups[n]
        return f"{f}[{b}:{b+3}]"
    def issue_K(jj, b):
        q, m = jj // 4, jj % 4
        e(f"s_add_u32 s49, s52, {b*393216 + q*4096}")
        if m: e(f"v_xor_b32 v7, {m*64}, v{VKD}")
        v = VKD if m == 0 else 7
        L.vmem(f"buffer_load_dwordx4 {grp(b*12 + jj)}, v{v}, s[{SK}:{SK+3}], s49 offen offset:{m*1024}", "K")
    def issue_V(jj, b):
        q, m = jj // 4, jj % 4
        e(f"s_add_u32 s49, s52, {b*393216 + q*4096}")
        v = VVA if (jj % 2 == 0) else VVB
        L.vmem(f"buffer_load_dwordx4 {grp(24 + b*12 + jj)}, v{v}, s[{SV}:{SV+3}], s49 offen offset:{m*1024}", "V")
    e(f"s_add_u32 s40, s44, {KBASE}")
    e(f"v_add_u32 v1, s40, v{VL16}")
    e(f"s_add_u32 s40, s54, {VB0}")
    e(f"v_add_u32 v2, s40, v{VL16}")
    def write_K():
        for b in range(2):
            for jj in range(12):
                e(f"ds_write_b128 v1, {grp(b*12 + jj)} offset:{b*12288 + jj*1024}")
    def write_V(q):
        for b in range(2):
            for m in range(4):
                e(f"ds_write_b128 v2, {grp(24 + b*12 + q*4 + m)} offset:{VB[q] - VB0 + b*4096 + m*1024}")
    K0 = env("K0", 0); KN = env("KN", 12)
    e("s_and_b32 s40, s3, 3")
    e("s_mul_i32 s40, s40, 1310720")
    e(f"s_add_u32 s{ST}, s56, s40")
    e(f"s_addc_u32 s{ST+1}, s57, 0")
    e(f"s_mov_b32 s{ST+2}, 1310720")
    e(f"s_mov_b32 s{ST+3}, 0x00020000")
    e("s_lshl_b32 s40, s4, 1")
    e("s_add_u32 s40, s40, s53")
    e("s_mul_i32 s51, s40, 5120")
    e(f"v_min_u32 v12, 39, v0")
    e(f"v_lshlrev_b32 v12, 7, v12")
    V0 = env("V0", 7); VNn = env("VN", 4)
    for p in range(12):
        if K0 + (p * KN) // 12 < 0:
            for b in range(2): issue_K(p, b)
    for i in range(NIT):
        e("s_barrier")
        for p in range(12):
            if K0 + (p * KN) // 12 == i:
                for b in range(2): issue_K(p, b)
            if V0 + (p * VNn) // 12 == i:
                for b in range(2): issue_V(p, b)
        for qd in range(4):
            if TAI[qd] == i and "notA" not in OPT:
                e(f"s_add_u32 s49, s51, {qd*327680}")
                L.vmem(f"buffer_load_dword v13, v12, s[{ST}:{ST+3}], s49 offen", "T")
        if i == 16:
            L.wait_vm({"K"})
            write_K()
        if i == 17:
            L.wait_vm({"V"})
            write_V(0); write_V(1)
        if i == 18:
            write_V(2)
            e("s_waitcnt lgkmcnt(0)")
    get_nonce(e, "kv")
    e("s_barrier")
    L.vm = []
    phase2_poller(L)
    A.lines += L.lines
    e = A.e
    A.label("L_compute")
    e("s_mul_i32 s43, s38, 6144")
    e("s_mul_i32 s44, s38, 12288")
    e("s_lshl_b32 s54, s38, 12")
    e("s_add_u32 s41, s39, s38")
    e("s_mul_i32 s40, s3, 48")
    e("s_mul_i32 s41, s41, 3")
    e("s_add_u32 s40, s40, s41")
    e("s_lshl_b32 s40, s40, 5")
    e("s_and_b32 s41, s7, 7")
    e("s_lshl_b32 s41, s41, 2")
    e("s_add_u32 s40, s40, s41")
    e("s_lshl_b32 s40, s40, 10")
    e(f"s_add_u32 s{SO}, s36, s40")
    e(f"s_addc_u32 s{SO+1}, s37, 0")
    e(f"s_sub_u32 s{SO+2}, {OBYTES}, s40")
    e(f"s_mov_b32 s{SO+3}, 0x00020000")
    e("s_mov_b32 s47, 32768")
    e("s_mov_b32 s48, 65536")
    e(f"v_lshrrev_b32 v{T0}, 1, v{VI}")
    e(f"v_xor_b32 v{T0}, v{T0}, v{VG}")
    e(f"v_lshlrev_b32 v{T0}, 4, v{T0}")
    e(f"v_lshlrev_b32 v{T1}, 7, v{VI}")
    e(f"v_add_u32 v{T0}, v{T0}, v{T1}")
    e(f"s_add_u32 s40, s43, {XBASE}")
    e(f"v_add_u32 v{VXR}, s40, v{T0}")
    e(f"v_xor_b32 v{VXR+1}, 64, v{VXR}")
    e(f"v_add_u32 v{VXR+2}, {2*XSLOT}, v{VXR}")
    e(f"v_add_u32 v{VXR+3}, {2*XSLOT}, v{VXR+1}")
    e(f"v_xor_b32 v{T0}, v{VI}, v{VG}")
    e(f"v_lshlrev_b32 v{T0}, 4, v{T0}")
    e(f"v_lshlrev_b32 v{T1}, 8, v{VI}")
    e(f"v_add_u32 v{T0}, v{T0}, v{T1}")
    e(f"s_add_u32 s40, s44, {KBASE}")
    e(f"v_add_u32 v{VKR}, s40, v{T0}")
    e(f"v_lshlrev_b32 v{T0}, 3, v{VG}")
    e(f"v_add_u32 v{T0}, v{T0}, v{VR}")
    e(f"v_lshlrev_b32 v{T0}, 8, v{T0}")
    e(f"v_and_b32 v{T1}, 1, v{VR}")
    e(f"v_xor_b32 v{T1}, v{T1}, v{VC}")
    e(f"v_lshlrev_b32 v{T1}, 4, v{T1}")
    e(f"v_add_u32 v{T0}, v{T0}, v{T1}")
    e(f"v_and_b32 v{T1}, 1, v{VC}")
    e(f"v_lshlrev_b32 v{T1}, 3, v{T1}")
    e(f"v_add_u32 v{T0}, v{T0}, v{T1}")
    e(f"v_add_u32 v{T0}, {RBASE}, v{T0}")
    e(f"v_and_b32 v{T1}, 1, v{VG}")
    e(f"v_lshlrev_b32 v{T1}, 1, v{T1}")
    e(f"v_lshrrev_b32 v{T2}, 1, v{VR}")
    e(f"v_or_b32 v{T1}, v{T1}, v{T2}")
    for s_ in range(4):
        e(f"v_xor_b32 v{T2}, {s_}, v{T1}")
        e(f"v_lshlrev_b32 v{T2}, 6, v{T2}")
        e(f"v_add_u32 v{TRA+2*s_}, v{T0}, v{T2}")
        e(f"v_xor_b32 v{TRA+2*s_+1}, 8, v{TRA+2*s_}")
    phase2_srds(e)
    def reads(i):
        Fb = F[i % 2]; Xb = XF[i % 2]
        so = (i % NS) * SLOT
        Lr = []
        for tq in range(3):
            Lr.append(f"ds_read_b128 {ar(Xb+tq*4,4)}, v{VXR + i % 2 + 2 * (((i//2) % NXS) // 2)} offset:{((i//2) % 2)*XSLOT + tq*2048}")
        for t in range(8):
            for hh in range(2):
                Lr.append(f"ds_read_b64_tr_b16 {ar(Fb + t*4 + hh*2, 2)}, v{TRA+t} offset:{so + hh*1024}")
        return Lr
    def mfma_q1(i, t, tq):
        Fb = F[i % 2]; Xb = XF[i % 2]
        a = ACC + (t * 3 + tq) * 4
        c = "0" if i == 0 else vr(a, 4)
        e(f"v_mfma_f32_16x16x32_bf16 {vr(a,4)}, {ar(Fb+t*4,4)}, {ar(Xb+tq*4,4)}, {c}")
    for i in range(NIT):
        A.c(f"---- iteration {i}")
        if i == 0: A.stamp()
        e("s_barrier")
        if i % 4 == 0: A.stamp()
        R = reads(i)
        for t in range(8):
            for tq in range(3):
                if i > 0: mfma_q1(i - 1, t, tq)
                if R: e(R.pop(0))
        e("s_waitcnt lgkmcnt(0)")
    for t in range(8):
        for tq in range(3): mfma_q1(NIT - 1, t, tq)
    e(f"v_mov_b32 v{T0}, 0")
    e(f"buffer_load_dwordx2 v[{VN}:{VN+1}], v{T0}, s[{SD}:{SD+3}], 0 offen sc0 sc1")
    KA = 0
    for s_ in range(1, 4): e(f"v_xor_b32 v{T0+s_-1}, {s_*64}, v{VKR}")
    for tk in range(3):
        for s_ in range(4):
            va = VKR if s_ == 0 else T0 + s_ - 1
            e(f"ds_read_b128 {ar(KA+(tk*4+s_)*4,4)}, v{va} offset:{tk*4096}")
    e("s_mov_b32 s50, 0xffff0000")
    e("s_mov_b32 s51, 0xffff0000")
    e("s_mov_b32 s52, 0x3e0293ee")
    def QP(tq, s_): return ACC + ((2 * s_) * 3 + tq) * 4
    for s_ in range(4):
        for tq in range(3):
            a = QP(tq, s_); b = ACC + ((2 * s_ + 1) * 3 + tq) * 4
            e(f"v_cvt_pk_bf16_f32 v{a}, v{a}, v{a+1}")
            e(f"v_cvt_pk_bf16_f32 v{a+1}, v{a+2}, v{a+3}")
            e(f"v_cvt_pk_bf16_f32 v{a+2}, v{b}, v{b+1}")
            e(f"v_cvt_pk_bf16_f32 v{a+3}, v{b+2}, v{b+3}")
    e("s_mov_b64 exec, s[50:51]")
    for s_ in range(4):
        for tq in range(3):
            d = QP(tq, s_)
            e(f"v_swap_b32 v{d}, v{d+2}")
            e(f"v_swap_b32 v{d+1}, v{d+3}")
    e("s_mov_b64 exec, -1")
    e(f"v_lshlrev_b32 v{T0}, 2, v{VG}")
    e(f"v_add_u32 v{T0}, v{T0}, v{VR}")
    e(f"v_and_b32 v{T1}, 7, v{T0}")
    e(f"v_lshlrev_b32 v{T0}, 8, v{T0}")
    e(f"v_lshrrev_b32 v{T2}, 1, v{VC}")
    e(f"v_lshlrev_b32 v{T2}, 4, v{T2}")
    e(f"v_add_u32 v{T0}, v{T0}, v{T2}")
    e(f"v_and_b32 v{T2}, 1, v{VC}")
    e(f"v_lshlrev_b32 v{T2}, 3, v{T2}")
    e(f"v_add_u32 v118, v{T0}, v{T2}")
    e(f"v_mov_b32 v119, v{T1}")
    e(f"s_add_u32 s40, s54, {VB0}")
    e(f"v_add_u32 v{T0}, s40, v118")
    A.stamp()
    e("s_waitcnt lgkmcnt(0)")
    STB = [12, 36, 60]
    PPB = [0, 6, 24]
    def st_mfma(tq):
        Lm = []
        for tk in range(3):
            d = STB[tq] + tk * 4
            for s_ in range(4):
                c = "0" if s_ == 0 else vr(d, 4)
                Lm.append(f"v_mfma_f32_16x16x32_bf16 {vr(d,4)}, {ar(KA+(tk*4+s_)*4,4)}, {vr(QP(tq,s_),4)}, {c}")
        return Lm
    def softmax(tq, pp):
        b = STB[tq]
        m = 120 + tq * 4; m2 = m + 1; sm = m + 2; sm2 = m + 3
        Lv = []
        x = Lv.append
        x(f"v_max3_f32 v{m}, v{b}, v{b+1}, v{b+2}")
        x(f"v_max3_f32 v{m2}, v{b+3}, v{b+4}, v{b+5}")
        x(f"v_max3_f32 v{m}, v{m}, v{b+6}, v{b+7}")
        x(f"v_max3_f32 v{m2}, v{m2}, v{b+8}, v{b+9}")
        x(f"v_max3_f32 v{m}, v{m}, v{b+10}, v{b+11}")
        x(f"v_max_f32 v{m}, v{m}, v{m2}")
        x(f"v_mov_b32 v{m2}, v{m}")
        x("s_nop 1")
        x(f"v_permlane16_swap_b32 v{m}, v{m2}")
        x(f"v_max_f32 v{m}, v{m}, v{m2}")
        x(f"v_mov_b32 v{m2}, v{m}")
        x("s_nop 1")
        x(f"v_permlane32_swap_b32 v{m}, v{m2}")
        x(f"v_max_f32 v{m}, v{m}, v{m2}")
        x(f"v_mul_f32 v{m}, s52, v{m}")
        for r in range(12): x(f"v_fma_f32 v{b+r}, v{b+r}, s52, -v{m}")
        for r in range(12): x(f"v_exp_f32 v{b+r}, v{b+r}")
        x("s_nop 0")
        x(f"v_add_f32 v{sm}, v{b}, v{b+1}")
        x(f"v_add_f32 v{sm2}, v{b+2}, v{b+3}")
        for r in range(4, 12, 2):
            x(f"v_add_f32 v{sm}, v{sm}, v{b+r}")
            x(f"v_add_f32 v{sm2}, v{sm2}, v{b+r+1}")
        x(f"v_add_f32 v{sm}, v{sm}, v{sm2}")
        x(f"v_mov_b32 v{sm2}, v{sm}")
        x("s_nop 1")
        x(f"v_permlane16_swap_b32 v{sm}, v{sm2}")
        x(f"v_add_f32 v{sm}, v{sm}, v{sm2}")
        x(f"v_mov_b32 v{sm2}, v{sm}")
        x("s_nop 1")
        x(f"v_permlane32_swap_b32 v{sm}, v{sm2}")
        x(f"v_add_f32 v{sm}, v{sm}, v{sm2}")
        x(f"v_rcp_f32 v{sm}, v{sm}")
        x("s_nop 0")
        for r in range(12): x(f"v_mul_f32 v{b+r}, v{b+r}, v{sm}")
        for k in range(6): x(f"v_cvt_pk_bf16_f32 v{pp+k}, v{b+2*k}, v{b+2*k+1}")
        return Lv
    for m_ in st_mfma(0): e(m_)
    vaddr = []
    for t in range(8):
        vaddr += [f"v_xor_b32 v{T2}, {t}, v{T1}", f"v_lshlrev_b32 v{T2}, 5, v{T2}", f"v_add_u32 v{TRA+t}, v{T0}, v{T2}"]
    M1 = st_mfma(1)
    for k, m_ in enumerate(M1):
        e(m_)
        for _ in range(2): e(vaddr.pop(0))
    M2 = st_mfma(2)
    S0 = softmax(0, 84)
    k = 0
    for ins in S0:
        e(ins); k += 1
        if k % 3 == 0 and M2: e(M2.pop(0))
    assert not M2
    PPB = [84, 90, 0]
    for ins in softmax(1, 90): e(ins)
    for ins in softmax(2, 0): e(ins)
    A.stamp()
    e("s_barrier")
    A.stamp()
    VF = 48
    def v_reads(t):
        for tk in range(3):
            e(f"ds_read_b64_tr_b16 {ar(VF+(t%6)*6+tk*2,2)}, v{TRA+t} offset:{VB[tk]-VB0}")
    OR_ = [36, 60]; OP_ = [12, 24]
    for t in range(4): v_reads(t)
    def pv32(t):
        f = VF + (t % 6) * 6
        for tq in range(3):
            o = OR_[(t // 2) % 2] + ((t % 2) * 3 + tq) * 4
            e(f"v_mfma_f32_16x16x32_bf16 {vr(o,4)}, {ar(f,4)}, {vr(PPB[tq],4)}, 0")
    def pv16(t):
        f = VF + (t % 6) * 6
        for tq in range(3):
            o = OR_[(t // 2) % 2] + ((t % 2) * 3 + tq) * 4
            e(f"v_mfma_f32_16x16x16_bf16 {vr(o,4)}, {ar(f+4,2)}, {vr(PPB[tq]+4,2)}, {vr(o,4)}")
    def conv_store(q):
        R = OR_[q % 2]; P = OP_[q % 2]
        for tq in range(3):
            d = P + tq * 4
            for u in range(2):
                o = R + (u * 3 + tq) * 4
                e(f"v_cvt_pk_bf16_f32 v{d+2*u}, v{o}, v{o+1}")
                e(f"v_cvt_pk_bf16_f32 v{d+2*u+1}, v{o+2}, v{o+3}")
            so = ["0", "s47", "s48"][tq]
            e(f"buffer_store_dwordx4 {vr(d,4)}, v{VL16}, s[{SO}:{SO+3}], {so} offen offset:{q*1024} sc1")
    for q in range(4):
        t0, t1 = 2 * q, 2 * q + 1
        npend = (min(2 * q + 3, 7) - t1) * 3
        e(f"s_waitcnt lgkmcnt({npend})")
        pv32(t0); pv32(t1)
        for t in (2 * q + 4, 2 * q + 5):
            if t < 8: v_reads(t)
        if q > 0: conv_store(q - 1)
        else: e("s_nop 5")
        pv16(t0); pv16(t1)
    e("s_nop 7")
    conv_store(3)
    A.stamp()
    TR = 96; VBR = 104
    e("s_lshr_b32 s40, s38, 1")
    e("s_lshl_b32 s40, s40, 2")
    e(f"v_xor_b32 v{T1}, s40, v119")
    for tn in range(4):
        e(f"v_xor_b32 v{T2}, {tn}, v{T1}")
        e(f"v_lshlrev_b32 v{T2}, 5, v{T2}")
        e(f"v_add_u32 v{TR+tn}, v118, v{T2}")
    e("s_and_b32 s40, s38, 1")
    e("s_lshl_b32 s40, s40, 13")
    e(f"s_add_u32 s40, s40, {BBASE}")
    e(f"v_add_u32 v{VBR}, s40, v{VL16}")
    e("s_waitcnt vmcnt(0)")
    e("s_barrier")
    e(f"v_readfirstlane_b32 s44, v{VN}")
    e("s_cmp_lg_u32 s44, 0")
    e("s_cbranch_scc1 L_nonce_ok")
    get_nonce(e, "c")
    A.label("L_nonce_ok")
    A.stamp()
    e("s_cmp_ge_u32 s4, 30")
    e("s_cbranch_scc1 L_fin")
    e("s_mul_i32 s40, s60, 327680")
    e("s_mul_i32 s41, s5, 1280")
    e("s_add_u32 s40, s40, s41")
    e("s_lshl_b32 s41, s61, 8")
    e("s_add_u32 s40, s40, s41")
    e(f"s_add_u32 s{SOUT}, s92, s40")
    e(f"s_addc_u32 s{SOUT+1}, s93, 0")
    e(f"s_sub_u32 s{SOUT+2}, 1966080, s40")
    e(f"s_mov_b32 s{SOUT+3}, 0x00020000")
    e("s_mul_i32 s63, s5, 30")
    e("s_add_u32 s63, s63, s4")
    e("s_lshl_b32 s40, s63, 18")
    e(f"s_add_u32 s40, s40, {PBASE}")
    e(f"s_add_u32 s{SP}, s36, s40")
    e(f"s_addc_u32 s{SP+1}, s37, 0")
    e(f"s_mov_b32 s{SP+2}, 262144")
    e(f"s_mov_b32 s{SP+3}, 0x00020000")
    e("s_barrier")
    A.stamp()
    e("s_barrier")
    AFr = [0, 16]; BFr = [32, 48]
    def reads2(n):
        i, sub = n >> 1, n & 1
        so = (i % NSL) * ASLOT
        Lr = []
        for tt in range(4):
            Lr.append(f"ds_read_b128 {ar(BFr[n%2]+tt*4,4)}, v{VBR} offset:{so + tt*2048 + sub*1024}")
        for tn in range(4):
            for hh in range(2):
                Lr.append(f"ds_read_b64_tr_b16 {ar(AFr[n%2]+tn*4+hh*2,2)}, v{TR+tn} offset:{so + sub*8192 + hh*4096}")
        return Lr
    def mfma2(n, tn, tt):
        a = ACC + (tn * 4 + tt) * 4
        c = "0" if n == 0 else vr(a, 4)
        e(f"v_mfma_f32_16x16x32_bf16 {vr(a,4)}, {ar(AFr[n%2]+tn*4,4)}, {ar(BFr[n%2]+tt*4,4)}, {c}")
    for n in range(2 * NIT2):
        if n % 2 == 0:
            A.c(f"---- p2 stage {n//2}")
            e("s_barrier")
            if n % 8 == 0: A.stamp()
        R = reads2(n)
        for tn in range(4):
            for tt in range(4):
                if n > 0: mfma2(n - 1, tn, tt)
                if R: e(R.pop(0))
        e("s_waitcnt lgkmcnt(0)")
    for tn in range(4):
        for tt in range(4): mfma2(2 * NIT2 - 1, tn, tt)
    A.stamp()
    BF = "bfp" in OPT
    e(f"s_lshl_b32 s40, s62, 14")
    e("s_lshl_b32 s41, s38, 12")
    e("s_add_u32 s40, s40, s41")
    e("s_nop 4")
    for tn in range(4):
        e(f"s_cmp_eq_u32 s62, {tn}")
        e(f"s_cbranch_scc1 L_skipst{tn}")
        e(f"s_add_u32 s42, s40, {tn*65536}")
        if BF:
            for tp in range(2):
                a = ACC + (tn * 4 + 2 * tp) * 4
                e(f"v_cvt_pk_bf16_f32 v{a}, v{a}, v{a+1}")
                e(f"v_cvt_pk_bf16_f32 v{a+1}, v{a+2}, v{a+3}")
                e(f"v_cvt_pk_bf16_f32 v{a+2}, v{a+4}, v{a+5}")
                e(f"v_cvt_pk_bf16_f32 v{a+3}, v{a+6}, v{a+7}")
                e(f"buffer_store_dwordx4 {vr(a,4)}, v{VL16}, s[{SP}:{SP+3}], s42 offen offset:{tp*1024} sc0 sc1")
        else:
            for tt in range(4):
                a = ACC + (tn * 4 + tt) * 4
                e(f"buffer_store_dwordx4 {vr(a,4)}, v{VL16}, s[{SP}:{SP+3}], s42 offen offset:{tt*1024} sc0 sc1")
        A.label(f"L_skipst{tn}")
    OWN = 64
    for tn in range(4):
        e(f"s_cmp_lg_u32 s62, {tn}")
        e(f"s_cbranch_scc1 L_skipmv{tn}")
        for r in range(16): e(f"v_mov_b32 v{OWN+r}, v{ACC+tn*16+r}")
        A.label(f"L_skipmv{tn}")
    e("s_lshl_b32 s43, s63, 2")
    e("s_add_u32 s43, s43, s38")
    e("s_lshl_b32 s43, s43, 7")
    e(f"s_add_u32 s43, s43, {F2BASE - F1BASE}")
    e("s_lshl_b32 s46, s62, 3")
    e(f"v_mov_b32 v{T2}, s46")
    e(f"v_and_b32 v{T0}, 3, v0") if False else None
    e(f"v_lshlrev_b32 v{T0}, 3, v{VC}")
    e("s_waitcnt vmcnt(0)")
    A.stamp()
    e("s_mov_b64 exec, 1")
    e(f"buffer_store_dwordx2 v[{VN}:{VN+1}], v{T2}, s[{SF}:{SF+3}], s43 offen sc0 sc1")
    e("s_mov_b64 exec, 15")
    e("s_mov_b32 s45, 0")
    A.label("L_poll2")
    e(f"buffer_load_dwordx2 v[80:81], v{T0}, s[{SF}:{SF+3}], s43 offen sc0 sc1")
    e("s_add_u32 s45, s45, 1")
    e("s_waitcnt vmcnt(0)")
    e(f"v_cmp_eq_u64 vcc, v[80:81], v[{VN}:{VN+1}]")
    e("s_cmp_ge_u32 s45, 0x100000")
    e("s_cbranch_scc1 L_poll2_d")
    e("s_cmp_eq_u64 vcc, 15")
    e("s_cbranch_scc0 L_poll2")
    A.label("L_poll2_d")
    e("s_mov_b64 exec, -1")
    A.stamp()
    e("s_lshl_b32 s40, s62, 16")
    e("s_add_u32 s40, s40, s41")
    for d in range(1, 4):
        e(f"s_add_u32 s42, s62, {d}")
        e("s_and_b32 s42, s42, 3")
        e("s_lshl_b32 s42, s42, 14")
        e("s_add_u32 s42, s42, s40")
        for tt in range(2 if BF else 4):
            e(f"buffer_load_dwordx4 {vr(ACC+((d-1)*4+tt)*4,4)}, v{VL16}, s[{SP}:{SP+3}], s42 offen offset:{tt*1024} sc0 sc1")
    e(f"v_mul_u32_u24 v{T0}, 2560, v{VI}")
    e(f"v_lshlrev_b32 v{T1}, 3, v{VG}")
    e(f"v_add_u32 v{T0}, v{T0}, v{T1}")
    e("s_and_b32 s40, s38, 1")
    e("s_mul_i32 s40, s40, 163840")
    e("s_lshr_b32 s42, s38, 1")
    e("s_lshl_b32 s42, s42, 7")
    e("s_add_u32 s40, s40, s42")
    e("s_lshl_b32 s42, s62, 5")
    e("s_add_u32 s40, s40, s42")
    e("s_waitcnt vmcnt(0)")
    for tt in range(4):
        o = OWN + tt * 4
        for d in range(3):
            if BF:
                src = ACC + (d * 4 + (tt >> 1)) * 4 + (tt & 1) * 2
                for h in range(2):
                    e(f"v_lshlrev_b32 v{T1}, 16, v{src+h}")
                    e(f"v_and_b32 v{T2}, 0xffff0000, v{src+h}")
                    e(f"v_add_f32 v{o+2*h}, v{o+2*h}, v{T1}")
                    e(f"v_add_f32 v{o+2*h+1}, v{o+2*h+1}, v{T2}")
            else:
                for r in range(4): e(f"v_add_f32 v{o+r}, v{o+r}, v{ACC+(d*4+tt)*4+r}")
        e(f"v_cvt_pk_bf16_f32 v{o}, v{o}, v{o+1}")
        e(f"v_cvt_pk_bf16_f32 v{o+1}, v{o+2}, v{o+3}")
        e(f"s_add_u32 s42, s40, {tt*40960}")
        e(f"buffer_store_dwordx2 {vr(o,2)}, v{T0}, s[{SOUT}:{SOUT+3}], s42 offen{' sc1' if 'scOut' in OPT else ''}")
    if DIAG:
        e("s_waitcnt vmcnt(0)")
        A.stamp()
    A.label("L_fin")
    if DIAG:
        e("s_lshl_b32 s40, s2, 2")
        e("s_add_u32 s40, s40, s38")
        e("s_lshl_b32 s40, s40, 8")
        e("s_add_u32 s40, s40, 0x8000000")
        e(f"s_add_u32 s{SP}, s36, s40")
        e(f"s_addc_u32 s{SP+1}, s37, 0")
        e(f"s_mov_b32 s{SP+2}, 256")
        e(f"s_mov_b32 s{SP+3}, 0x00020000")
        e(f"v_lshrrev_b32 v{T0}, 2, v{VL16}")
        e(f"buffer_store_dword v105, v{T0}, s[{SP}:{SP+3}], 0 offen")
    A.label("L_done")
    e("s_endpgm")
    return A.text(), NV, NA

def main():
    body, nv, na = gen()
    out = []
    out.append("; @launch grid=(256,1,1) block=(512,1,1) lds=163840")
    out.append('.amdgcn_target "amdgcn-amd-amdhsa--gfx950"')
    out.append(".text")
    name = NAME + "_kernel"
    out.append(f".globl {name}\n.p2align 8\n.type {name},@function\n{name}:")
    out.append(body)
    out.append('.section .rodata,"a"\n.p2align 6')
    out.append(f""".amdhsa_kernel {name}
  .amdhsa_next_free_vgpr {nv + na}
  .amdhsa_next_free_sgpr 100
  .amdhsa_accum_offset {nv}
  .amdhsa_group_segment_fixed_size 0
  .amdhsa_kernarg_size 104
  .amdhsa_user_sgpr_count 2
  .amdhsa_user_sgpr_kernarg_segment_ptr 1
  .amdhsa_system_sgpr_workgroup_id_x 1
.end_amdhsa_kernel
""")
    path = sys.argv[1] if len(sys.argv) > 1 else f"cdna_kernels/{NAME}.s"
    open(path, "w").write("\n".join(out))
main()
```

```python
import sys, os
DIAG = int(os.environ.get("DIAG", "0"))
EXP = os.environ.get("EXP", "").split(",")
OPT = os.environ.get("OPT", "").split(",")
NAME = "concat_heads__mha_block_cached__gqa_block_cached__near_ridge"
def env(k, d): return int(os.environ.get(k, str(d)))

class Asm:
    def __init__(self):
        self.lines = []; self.vm = []; self.nst = 0
    def e(self, s): self.lines.append("    " + s)
    def label(self, s): self.lines.append(s + ":")
    def c(self, s): self.lines.append("    ; " + s)
    def vmem(self, s, tag):
        self.e(s); self.vm.append(tag)
    def wait_vm(self, tags):
        last = -1
        for i, t in enumerate(self.vm):
            if t in tags: last = i
        if last < 0: return
        n = len(self.vm) - 1 - last
        assert n <= 63, n
        self.e(f"s_waitcnt vmcnt({n})")
        self.vm = self.vm[last + 1:]
    def stamp(self):
        if not DIAG: return
        n = self.nst; self.nst += 1
        assert n < 32
        self.e("s_memtime s[98:99]")
        self.e("s_waitcnt lgkmcnt(0)")
        self.e(f"v_writelane_b32 v135, s98, {n}")
    def text(self): return "\n".join(self.lines) + "\n"

def vr(b, n=1): return f"v{b}" if n == 1 else f"v[{b}:{b+n-1}]"
def ar(b, n=1): return f"a{b}" if n == 1 else f"a[{b}:{b+n-1}]"

OBYTES = 12582912
PBASE = 0x1000000
F1BASE = 0xF00000
F2BASE = 0xF10000

def gen():
    A = Asm(); e = A.e
    NS, NIT, PD = 5, 20, 4
    SLOT = 8192
    XBASE = 49152; XSLOT = 24576
    RBASE = XBASE + 3 * XSLOT
    VB = [XBASE + 1 * XSLOT, XBASE + 2 * XSLOT, RBASE]
    ACC = 0
    TRA = 96; VXR = 104; VKR = 106; VL16 = 107
    VI, VG, VR, VC = 108, 109, 110, 111
    T0, T1, T2 = 112, 113, 114
    VN = 116
    NV = 136; NA = 88
    F = [0, 32]; XF = [64, 76]
    SX, SW, SK, SV, SO = 8, 12, 16, 20, 24
    SA, SB, SP, SF, SOUT, SD, ST = 64, 68, 72, 76, 80, 84, 88
    TAI = [int(x) for x in os.environ.get("TAI", "19,19,19,19").split(",")]
    NSL, PD2, NIT2 = 4, 3, 16
    ASLOT = 16384; BBASE = 65536
    e("s_cmp_ge_u32 s2, 256")
    e("s_cbranch_scc1 L_done")
    A.stamp()
    e("s_and_b32 s3, s2, 7")
    e("s_lshr_b32 s4, s2, 3")
    e("s_lshr_b32 s5, s3, 2")
    e("s_mul_i32 s6, s5, 40")
    e("s_load_dwordx4 s[28:31], s[0:1], s6")
    e("s_load_dwordx4 s[32:35], s[0:1], s6 offset:16")
    e("s_load_dwordx2 s[56:57], s[0:1], s6 offset:32")
    e("s_load_dwordx4 s[92:95], s[0:1], 80")
    e("s_load_dwordx2 s[36:37], s[0:1], 96")
    e(f"v_lshrrev_b32 v{T0}, 6, v0")
    e("s_and_b32 s7, s3, 3")
    e("s_lshl_b32 s7, s7, 3")
    e(f"v_readfirstlane_b32 s55, v{T0}")
    e("s_lshr_b32 s39, s4, 2")
    e("s_add_u32 s7, s7, s39")
    e("s_and_b32 s38, s55, 3")
    e("s_and_b32 s39, s4, 3")
    e("s_lshl_b32 s39, s39, 2")
    e("v_and_b32 v0, 63, v0")
    e(f"v_and_b32 v{VI}, 15, v0")
    e(f"v_lshrrev_b32 v{VG}, 4, v0")
    e(f"v_lshlrev_b32 v{VL16}, 4, v0")
    e(f"v_bfe_u32 v{VR}, v0, 2, 2")
    e(f"v_and_b32 v{VC}, 3, v0")
    e("s_waitcnt lgkmcnt(0)")
    e("s_mul_i32 s40, s39, 61440")
    e(f"s_add_u32 s{SX}, s28, s40")
    e(f"s_addc_u32 s{SX+1}, s29, 0")
    e(f"s_mov_b32 s{SX+2}, 245760")
    e(f"s_mov_b32 s{SX+3}, 0x00020000")
    e("s_lshl_b32 s40, s7, 8")
    e(f"s_add_u32 s{SW}, s34, s40")
    e(f"s_addc_u32 s{SW+1}, s35, 0")
    e(f"s_sub_u32 s{SW+2}, {640*8192}, s40")
    e(f"s_mov_b32 s{SW+3}, 0x00020000")
    e("s_cmp_lt_u32 s55, 4")
    e("s_cbranch_scc1 L_srd_rest")
    e("s_cmp_lt_u32 s55, 6")
    e("s_cbranch_scc1 L_wx")
    A.label("L_srd_rest")
    e("s_lshl_b32 s40, s39, 5")
    e("s_add_u32 s40, s40, s7")
    e("s_mul_i32 s40, s40, 12288")
    e(f"s_add_u32 s{SK}, s30, s40")
    e(f"s_addc_u32 s{SK+1}, s31, 0")
    e(f"s_mov_b32 s{SK+2}, {3*393216 + 12288}")
    e(f"s_mov_b32 s{SK+3}, 0x00020000")
    e(f"s_add_u32 s{SV}, s32, s40")
    e(f"s_addc_u32 s{SV+1}, s33, 0")
    e(f"s_mov_b32 s{SV+2}, {3*393216 + 12288}")
    e(f"s_mov_b32 s{SV+3}, 0x00020000")
    e(f"s_mov_b32 s{SD}, s94")
    e(f"s_mov_b32 s{SD+1}, s95")
    e(f"s_mov_b32 s{SD+2}, 256")
    e(f"s_mov_b32 s{SD+3}, 0x00020000")
    e("s_cmp_lt_u32 s55, 4")
    e("s_cbranch_scc1 L_compute")
    e("s_branch L_kv")

    def phase2_srds(e):
        e("s_mul_i32 s60, s4, 52")
        e("s_lshr_b32 s60, s60, 8")
        e("s_mul_i32 s61, s60, 5")
        e("s_sub_u32 s61, s4, s61")
        e("s_and_b32 s62, s3, 3")
        e(f"s_add_u32 s{SF}, s36, {F1BASE}")
        e(f"s_addc_u32 s{SF+1}, s37, 0")
        e(f"s_mov_b32 s{SF+2}, 0x20000")
        e(f"s_mov_b32 s{SF+3}, 0x00020000")
    def get_nonce(e, lbl):
        e(f"v_mov_b32 v{T0}, 0")
        e("s_mov_b32 s45, 0")
        A_label = f"L_nonce_{lbl}"
        e(f"{A_label}:")
        e(f"buffer_load_dwordx2 v[{VN}:{VN+1}], v{T0}, s[{SD}:{SD+3}], 0 offen sc0 sc1")
        e("s_add_u32 s45, s45, 1")
        e("s_waitcnt vmcnt(0)")
        e(f"v_readfirstlane_b32 s44, v{VN}")
        e("s_cmp_ge_u32 s45, 0x100000")
        e(f"s_cbranch_scc1 {A_label}_d")
        e("s_cmp_eq_u32 s44, 0")
        e(f"s_cbranch_scc1 {A_label}")
        e(f"{A_label}_d:")

    def publish(e):
        e("s_lshl_b32 s40, s3, 13")
        e("s_lshl_b32 s41, s4, 3")
        e("v_lshlrev_b32 v8, 8, v0")
        e("v_add_u32 v8, s41, v8")
        e("s_mov_b32 exec_hi, 0")
        e(f"buffer_store_dwordx2 v[{VN}:{VN+1}], v8, s[{SF}:{SF+3}], s40 offen sc0 sc1")
    def phase2_loader(L):
        e = L.e
        VAD, VAD2 = 1, 2
        e("s_cmp_ge_u32 s4, 30")
        e("s_cbranch_scc1 L_done")
        phase2_srds(e)
        e("s_mul_i32 s40, s62, 1310720")
        e("s_lshl_b32 s41, s61, 8")
        e("s_add_u32 s40, s40, s41")
        e(f"s_add_u32 s{SA}, s56, s40")
        e(f"s_addc_u32 s{SA+1}, s57, 0")
        e(f"s_sub_u32 s{SA+2}, 5242880, s40")
        e(f"s_mov_b32 s{SA+3}, 0x00020000")
        e("s_mul_i32 s40, s3, 48")
        e("s_lshl_b32 s41, s60, 3")
        e("s_add_u32 s40, s40, s41")
        e("s_lshl_b32 s40, s40, 15")
        e(f"s_add_u32 s{SB}, s36, s40")
        e(f"s_addc_u32 s{SB+1}, s37, 0")
        e(f"s_sub_u32 s{SB+2}, {OBYTES}, s40")
        e(f"s_mov_b32 s{SB+3}, 0x00020000")
        e(f"v_lshlrev_b32 v{T0}, 1, v{VG}")
        e(f"v_xor_b32 v{T0}, v{T0}, v{VI}")
        e(f"v_lshlrev_b32 v{T0}, 4, v{T0}")
        e(f"v_mul_u32_u24 v{T1}, 1280, v{VG}")
        e(f"v_add_u32 v{VAD}, v{T0}, v{T1}")
        e(f"v_xor_b32 v{VAD2}, 128, v{VAD}")
        e("s_lshl_b32 s42, s38, 13")
        e("s_mul_i32 s43, s38, 40960")
        e("s_lshl_b32 s46, s38, 17")
        def issueA(i):
            for n in range(8):
                e(f"s_add_u32 m0, s42, {(i % NSL)*ASLOT + n*1024}")
                e(f"s_add_u32 s47, s43, {(64*i + 4*n)*1280}")
                v = VAD if n % 2 == 0 else VAD2
                L.vmem(f"buffer_load_dwordx4 v{v}, s[{SA}:{SA+3}], s47 offen lds", f"S{i}")
        def issueB(i):
            for m in (0, 2, 4, 6, 1, 3, 5, 7):
                e(f"s_add_u32 m0, s42, {BBASE + (i % NSL)*ASLOT + m*1024}")
                e(f"s_add_u32 s47, s46, {(m >> 1)*32768 + (2*i + (m & 1))*1024}")
                L.vmem(f"buffer_load_dwordx4 v{VL16}, s[{SB}:{SB+3}], s47 offen sc1 lds", f"S{i}")
        if "lateA" not in OPT:
            for i in range(PD2): issueA(i)
        e("s_barrier")
        if "lateA" in OPT:
            for i in range(PD2): issueA(i)
        e("s_barrier")
        issueB(0); issueB(1)
        e("s_barrier")
        issueB(2)
        for i in range(NIT2):
            L.wait_vm({f"S{i}"})
            e("s_barrier")
            if i + PD2 < NIT2:
                issueB(i + PD2); issueA(i + PD2)
        e("s_endpgm")
    def phase2_poller(L):
        e = L.e
        phase2_srds(e)
        e("s_barrier")
        e("s_cmp_eq_u32 s55, 6")
        e("s_cbranch_scc1 L_pub")
        for qd in range(4):
            if TAI[qd] >= 20:
                e(f"s_add_u32 s49, s51, {qd*327680}")
                e(f"buffer_load_dword v13, v12, s[{ST}:{ST+3}], s49 offen")
                e(f"s_sub_u32 s49, s49, 5120")
                e(f"buffer_load_dword v13, v12, s[{ST}:{ST+3}], s49 offen")
        e("s_endpgm")
        e("L_pub:")
        publish(e)
        e("s_cmp_ge_u32 s4, 30")
        e("s_cbranch_scc1 L_done")
        e("s_lshl_b32 s41, s4, 8")
        e("s_add_u32 s40, s40, s41")
        e("v_lshlrev_b32 v9, 3, v0")
        e("s_mul_i32 s41, s60, 43")
        e("s_lshr_b32 s41, s41, 6")
        e("s_lshl_b32 s42, s60, 1")
        e("s_add_u32 s42, s42, 1")
        e("s_mul_i32 s42, s42, 43")
        e("s_lshr_b32 s42, s42, 7")
        e("s_lshl_b32 s41, 1, s41")
        e("s_lshl_b32 s42, 1, s42")
        e("s_or_b32 s50, s41, s42")
        e("s_mov_b32 s51, 0")
        e("s_mov_b32 s45, 0")
        e("s_mov_b32 s54, 0x11111111")
        e("s_not_b32 s49, s50")
        e("s_and_b32 s49, s49, 15")
        e("s_mul_i32 s49, s49, 0x11111111")
        e(f"v_mov_b32 v10, {163840 - 64}")
        def pick(n):
            lbl = f"L_pick_{n}"
            e(f"{lbl}:")
            e("s_or_b32 s52, s51, s49")
            e("s_lshr_b32 s53, s52, 1")
            e("s_and_b32 s52, s52, s53")
            e("s_lshr_b32 s53, s52, 2")
            e("s_and_b32 s52, s52, s53")
            if "dyn" in OPT: e("s_and_b32 s52, s52, s54")
            else: e(f"s_and_b32 s52, s52, {1 << (4*n)}")
            e(f"s_cbranch_scc1 {lbl}_d")
            e(f"buffer_load_dwordx2 v[4:5], v9, s[{SF}:{SF+3}], s40 offen sc0 sc1")
            e("s_add_u32 s45, s45, 1")
            e("s_waitcnt vmcnt(0)")
            e(f"v_cmp_eq_u64 vcc, v[4:5], v[{VN}:{VN+1}]")
            e("s_mov_b32 s51, vcc_lo")
            e("s_cmp_lt_u32 s45, 0x100000")
            e(f"s_cbranch_scc1 {lbl}")
            e("s_mov_b32 s51, -1")
            e(f"s_branch {lbl}")
            e(f"{lbl}_d:")
        pick(0)
        e("s_barrier")
        pick(1)
        e("s_barrier")
        for i in range(NIT2):
            st = i + PD2
            if st < NIT2 and st % 2 == 0: pick(st >> 1)
            e("s_barrier")
        e("s_endpgm")

    A.label("L_wx")
    L = Asm(); e = L.e
    VXD, VXD2, VWD, VWD2 = 1, 2, 3, 4
    e("s_lshl_b32 s42, s38, 12")
    e("s_mul_i32 s43, s38, 12288")
    e(f"v_and_b32 v{T0}, 7, v0")
    e(f"v_xor_b32 v{T0}, v{T0}, v{VG}")
    e(f"v_lshlrev_b32 v{T0}, 4, v{T0}")
    e(f"v_lshrrev_b32 v{T1}, 3, v0")
    e(f"v_mul_u32_u24 v{T1}, 1280, v{T1}")
    e(f"v_add_u32 v{VXD}, v{T0}, v{T1}")
    e("s_mul_i32 s40, s38, 122880")
    e(f"v_add_u32 v{VXD}, s40, v{VXD}")
    e(f"v_xor_b32 v{VXD2}, 64, v{VXD}")
    e(f"v_lshrrev_b32 v{T0}, 1, v{VG}")
    e(f"v_lshlrev_b32 v{T0}, 2, v{T0}")
    e(f"v_and_b32 v{T1}, 1, v{VG}")
    e(f"v_or_b32 v{T0}, v{T0}, v{T1}")
    e(f"v_xor_b32 v{T0}, v{T0}, v{VI}")
    e(f"v_lshlrev_b32 v{T0}, 4, v{T0}")
    e(f"v_lshlrev_b32 v{T1}, 13, v{VG}")
    e(f"v_add_u32 v{VWD}, v{T0}, v{T1}")
    e("s_lshl_b32 s40, s38, 17")
    e(f"v_add_u32 v{VWD}, s40, v{VWD}")
    e(f"v_xor_b32 v{VWD2}, 128, v{VWD}")
    RA = env("RA", 3); RB = env("RB", 1)
    e("s_and_b32 s50, s4, 3")
    e(f"s_mul_i32 s50, s50, {RA}")
    e("s_lshr_b32 s51, s4, 2")
    e(f"s_mul_i32 s51, s51, {RB}")
    e("s_add_u32 s50, s50, s51")
    LS = env("LS", 0)
    NR = 10 - LS
    e(f"s_mul_i32 s51, s50, {(2048 + NR - 1) // NR}")
    e("s_lshr_b32 s51, s51, 11")
    e(f"s_mul_i32 s51, s51, {NR}")
    e("s_sub_u32 s50, s50, s51")
    e(f"s_add_u32 s50, s50, {LS}")
    e("s_lshl_b32 s51, s50, 19")
    e("s_lshl_b32 s52, s50, 7")
    def issue_W(i, n):
        e(f"s_add_u32 m0, s42, {RBASE + (i % NS)*SLOT + n*1024}")
        if i < 2 * LS: e(f"s_mov_b32 s49, {(i*32 + 4*n)*8192}")
        else: e(f"s_add_u32 s49, s51, {4*n*8192}")
        v = VWD if n < 2 else VWD2
        L.vmem(f"buffer_load_dwordx4 v{v}, s[{SW}:{SW+3}], s49 offen lds", f"W{i}")
        if n == 3 and i >= 2 * LS:
            e("s_add_u32 s51, s51, 262144")
            e("s_cmp_ge_u32 s51, 5242880")
            e(f"s_cselect_b32 s51, {LS*524288}, s51")
    def issue_X(d, jj):
        e(f"s_add_u32 m0, s43, {XBASE + (d % 3)*XSLOT + jj*1024}")
        if d < LS: e(f"s_mov_b32 s49, {jj*10240 + d*128}")
        else: e(f"s_add_u32 s49, s52, {jj*10240}")
        v = VXD if jj % 2 == 0 else VXD2
        L.vmem(f"buffer_load_dwordx4 v{v}, s[{SX}:{SX+3}], s49 offen lds", f"X{d}")
        if jj == 11 and d >= LS:
            e("s_add_u32 s52, s52, 128")
            e("s_cmp_ge_u32 s52, 1280")
            e(f"s_cselect_b32 s52, {LS*128}, s52")
    for n in range(4): issue_W(0, n)
    for jj in range(12): issue_X(0, jj)
    for i in range(1, PD):
        for n in range(4): issue_W(i, n)
        if i == 1:
            for jj in range(12): issue_X(1, jj)
    for i in range(NIT):
        L.wait_vm({f"W{i}", f"X{i//2}"})
        e("s_barrier")
        if i + PD < NIT:
            for n in range(4): issue_W(i + PD, n)
        if i // 2 + 2 < NIT // 2:
            for n in range(6): issue_X(i // 2 + 2, 6 * (i % 2) + n)
    e("s_barrier")
    L.vm = []
    phase2_loader(L)
    A.lines += L.lines
    A.label("L_kv")
    L = Asm(); e = L.e
    VKD, VVA, VVB = 4, 5, 6
    e("s_cmp_lg_u32 s2, 0")
    e("s_cbranch_scc1 L_nonp")
    e("s_cmp_lg_u32 s55, 6")
    e("s_cbranch_scc1 L_nonp")
    e("s_memrealtime s[96:97]")
    e("s_waitcnt lgkmcnt(0)")
    e("s_or_b32 s96, s96, 1")
    e("v_mov_b32 v14, s96")
    e("v_mov_b32 v15, s97")
    e("v_mov_b32 v16, 0")
    e(f"buffer_store_dwordx2 v[14:15], v16, s[{SD}:{SD+3}], 0 offen sc0 sc1")
    e("s_waitcnt vmcnt(0)")
    e("L_nonp:")
    e("s_and_b32 s53, s38, 1")
    e("s_mul_i32 s44, s53, 24576")
    e("s_lshl_b32 s54, s53, 13")
    e("s_mul_i32 s52, s53, 786432")
    e(f"v_xor_b32 v{T0}, v{VI}, v{VG}")
    e(f"v_lshlrev_b32 v{T0}, 4, v{T0}")
    e(f"v_lshlrev_b32 v{T1}, 8, v{VG}")
    e(f"v_add_u32 v{VKD}, v{T0}, v{T1}")
    for m in range(1, 4): e(f"v_xor_b32 v{7+m}, {m*64}, v{VKD}")
    e(f"v_lshlrev_b32 v{T0}, 1, v{VG}")
    e(f"v_xor_b32 v{T0}, v{T0}, v{VI}")
    e(f"v_lshlrev_b32 v{T0}, 4, v{T0}")
    e(f"v_add_u32 v{VVA}, v{T0}, v{T1}")
    e(f"v_xor_b32 v{VVB}, 128, v{VVA}")
    def issue_K(jj, b):
        q, m = jj // 4, jj % 4
        e(f"s_add_u32 m0, s44, {b*12288 + q*4096}")
        e(f"s_add_u32 s49, s52, {b*393216 + q*4096}")
        v = VKD if m == 0 else 7 + m
        L.vmem(f"buffer_load_dwordx4 v{v}, s[{SK}:{SK+3}], s49 offen offset:{m*1024} lds", "K")
    def issue_V(jj, b):
        q, m = jj // 4, jj % 4
        e(f"s_add_u32 m0, s54, {VB[q] + b*4096}")
        e(f"s_add_u32 s49, s52, {b*393216 + q*4096}")
        v = VVA if (jj % 2 == 0) else VVB
        L.vmem(f"buffer_load_dwordx4 v{v}, s[{SV}:{SV+3}], s49 offen offset:{m*1024} lds", "V")
    K0 = env("K0", 0); KN = env("KN", 12)
    e("s_and_b32 s40, s3, 3")
    e("s_mul_i32 s40, s40, 1310720")
    e(f"s_add_u32 s{ST}, s56, s40")
    e(f"s_addc_u32 s{ST+1}, s57, 0")
    e(f"s_mov_b32 s{ST+2}, 1310720")
    e(f"s_mov_b32 s{ST+3}, 0x00020000")
    e("s_lshl_b32 s40, s4, 1")
    e("s_add_u32 s40, s40, s53")
    e("s_mul_i32 s51, s40, 5120")
    e(f"v_min_u32 v12, 39, v0")
    e(f"v_lshlrev_b32 v12, 7, v12")
    def tlb_touch():
        phase2_srds(e)
        e(f"s_mov_b32 s{SP}, s36")
        e(f"s_mov_b32 s{SP+1}, s37")
        e(f"s_mov_b32 s{SP+2}, 0x2000000")
        e(f"s_mov_b32 s{SP+3}, 0x00020000")
        e(f"s_mov_b32 s{SOUT}, s92")
        e(f"s_mov_b32 s{SOUT+1}, s93")
        e(f"s_mov_b32 s{SOUT+2}, 1966080")
        e(f"s_mov_b32 s{SOUT+3}, 0x00020000")
        e("v_mov_b32 v17, 0")
        e("s_mul_i32 s40, s3, 1572864")
        L.vmem(f"buffer_load_dword v13, v17, s[{SP}:{SP+3}], s40 offen sc0 sc1", "T")
        e("s_add_u32 s40, s40, 1572860")
        L.vmem(f"buffer_load_dword v13, v17, s[{SP}:{SP+3}], s40 offen sc0 sc1", "T")
        e(f"s_mov_b32 s40, {F1BASE + 0x1f000}")
        L.vmem(f"buffer_load_dword v13, v17, s[{SP}:{SP+3}], s40 offen sc0 sc1", "T")
        e("s_mul_i32 s40, s5, 30")
        e("s_add_u32 s40, s40, s4")
        e("s_lshl_b32 s40, s40, 18")
        e(f"s_add_u32 s40, s40, {PBASE}")
        L.vmem(f"buffer_load_dword v13, v17, s[{SP}:{SP+3}], s40 offen sc0 sc1", "T")
        e("s_mul_i32 s40, s60, 327680")
        L.vmem(f"buffer_load_dword v13, v17, s[{SOUT}:{SOUT+3}], s40 offen sc0 sc1", "T")
        e("s_add_u32 s40, s40, 327676")
        L.vmem(f"buffer_load_dword v13, v17, s[{SOUT}:{SOUT+3}], s40 offen sc0 sc1", "T")
        L.vmem(f"buffer_load_dword v13, v17, s[{ST}:{ST+3}], 0 offen", "T")
        e("s_mov_b32 s40, 1310716")
        L.vmem(f"buffer_load_dword v13, v17, s[{ST}:{ST+3}], s40 offen", "T")
        L.vmem(f"buffer_load_dword v13, v17, s[{SV}:{SV+3}], s52 offen", "T")
    if "codepf" in OPT:
        e("s_getpc_b64 s[96:97]")
        e("L_pc:")
        e(f"s_sub_u32 s96, s96, L_pc-{NAME}_kernel")
        e("s_subb_u32 s97, s97, 0")
        e(f"s_mov_b32 s{SA}, s96")
        e(f"s_mov_b32 s{SA+1}, s97")
        e(f"s_mov_b32 s{SA+2}, L_end-{NAME}_kernel")
        e(f"s_mov_b32 s{SA+3}, 0x00020000")
        e("s_lshl_b32 s40, s4, 1")
        e("s_add_u32 s40, s40, s53")
        e("s_mul_i32 s40, s40, 768")
        e("v_min_u32 v17, 5, v0")
        e("v_lshlrev_b32 v17, 7, v17")
        L.vmem(f"buffer_load_dword v13, v17, s[{SA}:{SA+3}], s40 offen", "T")
    TLBI = env("TLBI", -1)
    for i in range(NIT):
        if i == NIT - 1: L.wait_vm({"K"})
        e("s_barrier")
        if i == TLBI: tlb_touch()
        for p in range(12):
            if K0 + (p * KN) // 12 == i:
                for b in range(2): issue_K(p, b)
        VS = {16: 0, 17: 8, env("V3", 19): 4}
        if i in VS:
            for b in range(2):
                for jj in range(4): issue_V(VS[i] + jj, b)
        for qd in range(4):
            if TAI[qd] == i and "notA" not in OPT:
                e(f"s_add_u32 s49, s51, {qd*327680}")
                L.vmem(f"buffer_load_dword v13, v12, s[{ST}:{ST+3}], s49 offen", "T")
    L.wait_vm({"V"})
    e("s_barrier")
    get_nonce(e, "kv")
    L.vm = []
    phase2_poller(L)
    A.lines += L.lines
    e = A.e
    A.label("L_compute")
    e("s_mul_i32 s43, s38, 6144")
    e("s_mul_i32 s44, s38, 12288")
    e("s_lshl_b32 s54, s38, 12")
    e("s_add_u32 s41, s39, s38")
    e("s_mul_i32 s40, s3, 48")
    e("s_mul_i32 s41, s41, 3")
    e("s_add_u32 s40, s40, s41")
    e("s_lshl_b32 s40, s40, 5")
    e("s_and_b32 s41, s7, 7")
    e("s_lshl_b32 s41, s41, 2")
    e("s_add_u32 s40, s40, s41")
    e("s_lshl_b32 s40, s40, 10")
    e(f"s_add_u32 s{SO}, s36, s40")
    e(f"s_addc_u32 s{SO+1}, s37, 0")
    e(f"s_sub_u32 s{SO+2}, {OBYTES}, s40")
    e(f"s_mov_b32 s{SO+3}, 0x00020000")
    e("s_mov_b32 s47, 32768")
    e("s_mov_b32 s48, 65536")
    e(f"v_lshrrev_b32 v{T0}, 1, v{VI}")
    e(f"v_xor_b32 v{T0}, v{T0}, v{VG}")
    e(f"v_lshlrev_b32 v{T0}, 4, v{T0}")
    e(f"v_lshlrev_b32 v{T1}, 7, v{VI}")
    e(f"v_add_u32 v{T0}, v{T0}, v{T1}")
    e(f"s_add_u32 s40, s43, {XBASE}")
    e(f"v_add_u32 v{VXR}, s40, v{T0}")
    e(f"v_xor_b32 v{VXR+1}, 64, v{VXR}")
    e(f"v_xor_b32 v{T0}, v{VI}, v{VG}")
    e(f"v_lshlrev_b32 v{T0}, 4, v{T0}")
    e(f"v_lshlrev_b32 v{T1}, 8, v{VI}")
    e(f"v_add_u32 v{T0}, v{T0}, v{T1}")
    e(f"v_add_u32 v{VKR}, s44, v{T0}")
    e(f"v_lshlrev_b32 v{T0}, 3, v{VG}")
    e(f"v_add_u32 v{T0}, v{T0}, v{VR}")
    e(f"v_lshlrev_b32 v{T0}, 8, v{T0}")
    e(f"v_and_b32 v{T1}, 1, v{VR}")
    e(f"v_xor_b32 v{T1}, v{T1}, v{VC}")
    e(f"v_lshlrev_b32 v{T1}, 4, v{T1}")
    e(f"v_add_u32 v{T0}, v{T0}, v{T1}")
    e(f"v_and_b32 v{T1}, 1, v{VC}")
    e(f"v_lshlrev_b32 v{T1}, 3, v{T1}")
    e(f"v_add_u32 v{T0}, v{T0}, v{T1}")
    e(f"v_add_u32 v{T0}, {RBASE}, v{T0}")
    e(f"v_and_b32 v{T1}, 1, v{VG}")
    e(f"v_lshlrev_b32 v{T1}, 1, v{T1}")
    e(f"v_lshrrev_b32 v{T2}, 1, v{VR}")
    e(f"v_or_b32 v{T1}, v{T1}, v{T2}")
    for s_ in range(4):
        e(f"v_xor_b32 v{T2}, {s_}, v{T1}")
        e(f"v_lshlrev_b32 v{T2}, 6, v{T2}")
        e(f"v_add_u32 v{TRA+2*s_}, v{T0}, v{T2}")
        e(f"v_xor_b32 v{TRA+2*s_+1}, 8, v{TRA+2*s_}")
    phase2_srds(e)
    def reads(i):
        Fb = F[i % 2]; Xb = XF[i % 2]
        so = (i % NS) * SLOT
        Lr = []
        for tq in range(3):
            Lr.append(f"ds_read_b128 {ar(Xb+tq*4,4)}, v{VXR + i % 2} offset:{((i//2) % 3)*XSLOT + tq*2048}")
        for t in range(8):
            for hh in range(2):
                Lr.append(f"ds_read_b64_tr_b16 {ar(Fb + t*4 + hh*2, 2)}, v{TRA+t} offset:{so + hh*1024}")
        return Lr
    def mfma_q1(i, t, tq):
        Fb = F[i % 2]; Xb = XF[i % 2]
        a = ACC + (t * 3 + tq) * 4
        c = "0" if i == 0 else vr(a, 4)
        e(f"v_mfma_f32_16x16x32_bf16 {vr(a,4)}, {ar(Fb+t*4,4)}, {ar(Xb+tq*4,4)}, {c}")
    for i in range(NIT):
        A.c(f"---- iteration {i}")
        if i == 0: A.stamp()
        e("s_barrier")
        if i % 4 == 0: A.stamp()
        R = reads(i)
        k = 0
        RP = env("RP1", 0)
        for t in range(8):
            for tq in range(3):
                if i > 0: mfma_q1(i - 1, t, tq)
                if R: e(R.pop(0))
                if R and RP and k % RP == 0: e(R.pop(0))
                k += 1
        e("s_waitcnt lgkmcnt(0)")
    KA = 0
    def QP(tq, s_): return ACC + ((2 * s_) * 3 + tq) * 4
    pre = [f"v_and_b32 v{T1}, 1, v{VG}", f"v_lshlrev_b32 v{T1}, 3, v{T1}", f"v_xor_b32 v120, v{T1}, v{VKR}", "v_xor_b32 v121, 8, v120"]
    for s_ in range(1, 4):
        pre += [f"v_xor_b32 v{120+2*s_}, {s_*64}, v120", f"v_xor_b32 v{121+2*s_}, {s_*64}, v121"]
    for x_ in pre: e(x_)
    def kread(f):
        tk, s_ = f // 4, f % 4
        return [f"ds_read_b64 {ar(KA+f*4+2*h,2)}, v{120+2*s_+h} offset:{tk*4096}" for h in range(2)]
    def cvt(s_, tq):
        a = QP(tq, s_); b = ACC + ((2 * s_ + 1) * 3 + tq) * 4
        return [f"v_cvt_pk_bf16_f32 v{a}, v{a}, v{a+1}", f"v_cvt_pk_bf16_f32 v{a+1}, v{a+2}, v{a+3}",
                f"v_cvt_pk_bf16_f32 v{a+2}, v{b}, v{b+1}", f"v_cvt_pk_bf16_f32 v{a+3}, v{b+2}, v{b+3}"]
    fill = {k: [] for k in range(24)}
    kr = []
    for f in range(8): kr += kread(f)
    for k in range(8): fill[k] += kr[2*k:2*k+2]
    kr = []
    for f in range(8, 12): kr += kread(f)
    for k in range(8): fill[12 + k] += [kr[k]]
    for s_ in range(3):
        c_ = cvt(s_, 0) + cvt(s_, 1) + cvt(s_, 2)
        k0 = 6 * (s_ + 1) + 3
        for n_, ins in enumerate(c_):
            fill[min(k0 + n_ // 2, 23)].append(ins)
    k = 0
    for t in range(8):
        for tq in range(3):
            mfma_q1(NIT - 1, t, tq)
            for ins in fill[k]: e(ins)
            k += 1
    e("s_mov_b32 s52, 0x3e0293ee")
    e(f"v_lshlrev_b32 v{T0}, 2, v{VG}")
    e(f"v_add_u32 v{T0}, v{T0}, v{VR}")
    e(f"v_and_b32 v{T1}, 7, v{T0}")
    e(f"v_lshlrev_b32 v{T0}, 8, v{T0}")
    e(f"v_lshrrev_b32 v{T2}, 1, v{VC}")
    e(f"v_lshlrev_b32 v{T2}, 4, v{T2}")
    e(f"v_add_u32 v{T0}, v{T0}, v{T2}")
    e(f"v_and_b32 v{T2}, 1, v{VC}")
    e(f"v_lshlrev_b32 v{T2}, 3, v{T2}")
    e(f"v_add_u32 v118, v{T0}, v{T2}")
    e(f"v_mov_b32 v119, v{T1}")
    e(f"s_add_u32 s40, s54, {VB[0]}")
    e(f"v_add_u32 v{T0}, s40, v118")
    for tq in range(3):
        for ins in cvt(3, tq): e(ins)
    A.stamp()
    e("s_waitcnt lgkmcnt(0)")
    STB = [12, 36, 60]
    PPB = [0, 6, 24]
    def st_mfma(tq):
        Lm = []
        for tk in range(3):
            d = STB[tq] + tk * 4
            for s_ in range(4):
                c = "0" if s_ == 0 else vr(d, 4)
                Lm.append(f"v_mfma_f32_16x16x32_bf16 {vr(d,4)}, {ar(KA+(tk*4+s_)*4,4)}, {vr(QP(tq,s_),4)}, {c}")
        return Lm
    def softmax(tq, pp):
        b = STB[tq]
        m = 120 + tq * 4; m2 = m + 1; sm = m + 2; sm2 = m + 3
        Lv = []
        x = Lv.append
        x(f"v_max3_f32 v{m}, v{b}, v{b+1}, v{b+2}")
        x(f"v_max3_f32 v{m2}, v{b+3}, v{b+4}, v{b+5}")
        x(f"v_max3_f32 v{m}, v{m}, v{b+6}, v{b+7}")
        x(f"v_max3_f32 v{m2}, v{m2}, v{b+8}, v{b+9}")
        x(f"v_max3_f32 v{m}, v{m}, v{b+10}, v{b+11}")
        x(f"v_max_f32 v{m}, v{m}, v{m2}")
        x(f"v_mov_b32 v{m2}, v{m}")
        x("s_nop 1")
        x(f"v_permlane16_swap_b32 v{m}, v{m2}")
        x(f"v_max_f32 v{m}, v{m}, v{m2}")
        x(f"v_mov_b32 v{m2}, v{m}")
        x("s_nop 1")
        x(f"v_permlane32_swap_b32 v{m}, v{m2}")
        x(f"v_max_f32 v{m}, v{m}, v{m2}")
        x(f"v_mul_f32 v{m}, s52, v{m}")
        for r in range(12): x(f"v_fma_f32 v{b+r}, v{b+r}, s52, -v{m}")
        for r in range(12): x(f"v_exp_f32 v{b+r}, v{b+r}")
        x("s_nop 0")
        x(f"v_add_f32 v{sm}, v{b}, v{b+1}")
        x(f"v_add_f32 v{sm2}, v{b+2}, v{b+3}")
        for r in range(4, 12, 2):
            x(f"v_add_f32 v{sm}, v{sm}, v{b+r}")
            x(f"v_add_f32 v{sm2}, v{sm2}, v{b+r+1}")
        x(f"v_add_f32 v{sm}, v{sm}, v{sm2}")
        x(f"v_mov_b32 v{sm2}, v{sm}")
        x("s_nop 1")
        x(f"v_permlane16_swap_b32 v{sm}, v{sm2}")
        x(f"v_add_f32 v{sm}, v{sm}, v{sm2}")
        x(f"v_mov_b32 v{sm2}, v{sm}")
        x("s_nop 1")
        x(f"v_permlane32_swap_b32 v{sm}, v{sm2}")
        x(f"v_add_f32 v{sm}, v{sm}, v{sm2}")
        x(f"v_rcp_f32 v{sm}, v{sm}")
        x("s_nop 0")
        for r in range(12): x(f"v_mul_f32 v{b+r}, v{b+r}, v{sm}")
        for k in range(6): x(f"v_cvt_pk_bf16_f32 v{pp+k}, v{b+2*k}, v{b+2*k+1}")
        return Lv
    for m_ in st_mfma(0): e(m_)
    vaddr = []
    for t in range(8):
        vaddr += [f"v_xor_b32 v{T2}, {t}, v{T1}", f"v_lshlrev_b32 v{T2}, 5, v{T2}", f"v_add_u32 v{TRA+t}, v{T0}, v{T2}"]
    M1 = st_mfma(1)
    for k, m_ in enumerate(M1):
        e(m_)
        for _ in range(2): e(vaddr.pop(0))
    M2 = st_mfma(2)
    S0 = softmax(0, 84)
    k = 0
    for ins in S0:
        e(ins); k += 1
        if k % 3 == 0 and M2: e(M2.pop(0))
    assert not M2
    PPB = [84, 90, 0]
    for ins in softmax(1, 90): e(ins)
    for ins in softmax(2, 0): e(ins)
    A.stamp()
    e("s_barrier")
    A.stamp()
    VF = 48
    def v_reads(t):
        for tk in range(3):
            e(f"ds_read_b64_tr_b16 {ar(VF+(t%6)*6+tk*2,2)}, v{TRA+t} offset:{VB[tk]-VB[0]}")
    OR_ = [36, 60]; OP_ = [12, 24]
    for t in range(4): v_reads(t)
    def pv32(t):
        f = VF + (t % 6) * 6
        for tq in range(3):
            o = OR_[(t // 2) % 2] + ((t % 2) * 3 + tq) * 4
            e(f"v_mfma_f32_16x16x32_bf16 {vr(o,4)}, {ar(f,4)}, {vr(PPB[tq],4)}, 0")
    def pv16(t):
        f = VF + (t % 6) * 6
        for tq in range(3):
            o = OR_[(t // 2) % 2] + ((t % 2) * 3 + tq) * 4
            e(f"v_mfma_f32_16x16x16_bf16 {vr(o,4)}, {ar(f+4,2)}, {vr(PPB[tq]+4,2)}, {vr(o,4)}")
    def conv_store(q):
        R = OR_[q % 2]; P = OP_[q % 2]
        for tq in range(3):
            d = P + tq * 4
            for u in range(2):
                o = R + (u * 3 + tq) * 4
                e(f"v_cvt_pk_bf16_f32 v{d+2*u}, v{o}, v{o+1}")
                e(f"v_cvt_pk_bf16_f32 v{d+2*u+1}, v{o+2}, v{o+3}")
            so = ["0", "s47", "s48"][tq]
            e(f"buffer_store_dwordx4 {vr(d,4)}, v{VL16}, s[{SO}:{SO+3}], {so} offen offset:{q*1024} sc1")
    for q in range(4):
        t0, t1 = 2 * q, 2 * q + 1
        npend = (min(2 * q + 3, 7) - t1) * 3
        e(f"s_waitcnt lgkmcnt({npend})")
        pv32(t0); pv32(t1)
        for t in (2 * q + 4, 2 * q + 5):
            if t < 8: v_reads(t)
        if q > 0: conv_store(q - 1)
        else: e("s_nop 5")
        pv16(t0); pv16(t1)
    e("s_nop 7")
    conv_store(3)
    A.stamp()
    TR = 96; VBR = 104
    e("s_lshr_b32 s40, s38, 1")
    e("s_lshl_b32 s40, s40, 2")
    e(f"v_xor_b32 v{T1}, s40, v119")
    for tn in range(4):
        e(f"v_xor_b32 v{T2}, {tn}, v{T1}")
        e(f"v_lshlrev_b32 v{T2}, 5, v{T2}")
        e(f"v_add_u32 v{TR+tn}, v118, v{T2}")
    e("s_and_b32 s40, s38, 1")
    e("s_lshl_b32 s40, s40, 13")
    e(f"s_add_u32 s40, s40, {BBASE}")
    e(f"v_add_u32 v{VBR}, s40, v{VL16}")
    e("s_waitcnt vmcnt(0)")
    e("s_barrier")
    A.stamp()
    e("s_cmp_ge_u32 s4, 30")
    e("s_cbranch_scc1 L_fin")
    e("s_mul_i32 s40, s60, 327680")
    e("s_mul_i32 s41, s5, 1280")
    e("s_add_u32 s40, s40, s41")
    e("s_lshl_b32 s41, s61, 8")
    e("s_add_u32 s40, s40, s41")
    e(f"s_add_u32 s{SOUT}, s92, s40")
    e(f"s_addc_u32 s{SOUT+1}, s93, 0")
    e(f"s_sub_u32 s{SOUT+2}, 1966080, s40")
    e(f"s_mov_b32 s{SOUT+3}, 0x00020000")
    e("s_mul_i32 s63, s5, 30")
    e("s_add_u32 s63, s63, s4")
    e("s_lshl_b32 s40, s63, 18")
    e(f"s_add_u32 s40, s40, {PBASE}")
    e(f"s_add_u32 s{SP}, s36, s40")
    e(f"s_addc_u32 s{SP+1}, s37, 0")
    e(f"s_mov_b32 s{SP+2}, 262144")
    e(f"s_mov_b32 s{SP+3}, 0x00020000")
    e("s_barrier")
    A.stamp()
    e("s_barrier")
    AFr = [0, 16]; BFr = [32, 48]
    def reads2(n):
        i, sub = n >> 1, n & 1
        so = (i % NSL) * ASLOT
        Lr = []
        for tt in range(4):
            Lr.append(f"ds_read_b128 {ar(BFr[n%2]+tt*4,4)}, v{VBR} offset:{so + tt*2048 + sub*1024}")
        for tn in range(4):
            for hh in range(2):
                Lr.append(f"ds_read_b64_tr_b16 {ar(AFr[n%2]+tn*4+hh*2,2)}, v{TR+tn} offset:{so + sub*8192 + hh*4096}")
        return Lr
    def mfma2(n, tn, tt):
        a = ACC + (tn * 4 + tt) * 4
        c = "0" if n == 0 else vr(a, 4)
        e(f"v_mfma_f32_16x16x32_bf16 {vr(a,4)}, {ar(AFr[n%2]+tn*4,4)}, {ar(BFr[n%2]+tt*4,4)}, {c}")
    for n in range(2 * NIT2):
        if n % 2 == 0:
            A.c(f"---- p2 stage {n//2}")
            e("s_barrier")
            if n % 8 == 0: A.stamp()
        if n == 16:
            e(f"v_mov_b32 v{T0}, 0")
            e(f"buffer_load_dwordx2 v[{VN}:{VN+1}], v{T0}, s[{SD}:{SD+3}], 0 offen sc0 sc1")
        R = reads2(n)
        k = 0
        RP = env("RP2", 0)
        for tn in range(4):
            for tt in range(4):
                if n > 0: mfma2(n - 1, tn, tt)
                if R: e(R.pop(0))
                if R and RP and k % RP == 0: e(R.pop(0))
                k += 1
        e("s_waitcnt lgkmcnt(0)")
    for tn in range(4):
        for tt in range(4): mfma2(2 * NIT2 - 1, tn, tt)
    A.stamp()
    BF = "bfp" in OPT
    e(f"s_lshl_b32 s40, s62, 14")
    e("s_lshl_b32 s41, s38, 12")
    e("s_add_u32 s40, s40, s41")
    e("s_nop 4")
    for tn in range(4):
        e(f"s_cmp_eq_u32 s62, {tn}")
        e(f"s_cbranch_scc1 L_skipst{tn}")
        e(f"s_add_u32 s42, s40, {tn*65536}")
        if BF:
            for tp in range(2):
                a = ACC + (tn * 4 + 2 * tp) * 4
                e(f"v_cvt_pk_bf16_f32 v{a}, v{a}, v{a+1}")
                e(f"v_cvt_pk_bf16_f32 v{a+1}, v{a+2}, v{a+3}")
                e(f"v_cvt_pk_bf16_f32 v{a+2}, v{a+4}, v{a+5}")
                e(f"v_cvt_pk_bf16_f32 v{a+3}, v{a+6}, v{a+7}")
                e(f"buffer_store_dwordx4 {vr(a,4)}, v{VL16}, s[{SP}:{SP+3}], s42 offen offset:{tp*1024} sc0 sc1")
        else:
            for tt in range(4):
                a = ACC + (tn * 4 + tt) * 4
                e(f"buffer_store_dwordx4 {vr(a,4)}, v{VL16}, s[{SP}:{SP+3}], s42 offen offset:{tt*1024} sc0 sc1")
        A.label(f"L_skipst{tn}")
    OWN = 64
    for tn in range(4):
        e(f"s_cmp_lg_u32 s62, {tn}")
        e(f"s_cbranch_scc1 L_skipmv{tn}")
        for r in range(16): e(f"v_mov_b32 v{OWN+r}, v{ACC+tn*16+r}")
        A.label(f"L_skipmv{tn}")
    e("s_lshl_b32 s43, s63, 2")
    e("s_add_u32 s43, s43, s38")
    e("s_lshl_b32 s43, s43, 7")
    e(f"s_add_u32 s43, s43, {F2BASE - F1BASE}")
    e("s_lshl_b32 s46, s62, 3")
    e(f"v_mov_b32 v{T2}, s46")
    e(f"v_and_b32 v{T0}, 3, v0") if False else None
    e(f"v_lshlrev_b32 v{T0}, 3, v{VC}")
    e("s_waitcnt vmcnt(0)")
    A.stamp()
    e("s_mov_b64 exec, 1")
    e(f"buffer_store_dwordx2 v[{VN}:{VN+1}], v{T2}, s[{SF}:{SF+3}], s43 offen sc0 sc1")
    e("s_mov_b64 exec, 15")
    e("s_mov_b32 s45, 0")
    A.label("L_poll2")
    e(f"buffer_load_dwordx2 v[80:81], v{T0}, s[{SF}:{SF+3}], s43 offen sc0 sc1")
    e("s_add_u32 s45, s45, 1")
    e("s_waitcnt vmcnt(0)")
    e(f"v_cmp_eq_u64 vcc, v[80:81], v[{VN}:{VN+1}]")
    e("s_cmp_ge_u32 s45, 0x100000")
    e("s_cbranch_scc1 L_poll2_d")
    e("s_cmp_eq_u64 vcc, 15")
    e("s_cbranch_scc0 L_poll2")
    A.label("L_poll2_d")
    e("s_mov_b64 exec, -1")
    A.stamp()
    e("s_lshl_b32 s40, s62, 16")
    e("s_add_u32 s40, s40, s41")
    for d in range(1, 4):
        e(f"s_add_u32 s42, s62, {d}")
        e("s_and_b32 s42, s42, 3")
        e("s_lshl_b32 s42, s42, 14")
        e("s_add_u32 s42, s42, s40")
        for tt in range(2 if BF else 4):
            e(f"buffer_load_dwordx4 {vr(ACC+((d-1)*4+tt)*4,4)}, v{VL16}, s[{SP}:{SP+3}], s42 offen offset:{tt*1024} sc0 sc1")
    e(f"v_mul_u32_u24 v{T0}, 2560, v{VI}")
    e(f"v_lshlrev_b32 v{T1}, 3, v{VG}")
    e(f"v_add_u32 v{T0}, v{T0}, v{T1}")
    e("s_and_b32 s40, s38, 1")
    e("s_mul_i32 s40, s40, 163840")
    e("s_lshr_b32 s42, s38, 1")
    e("s_lshl_b32 s42, s42, 7")
    e("s_add_u32 s40, s40, s42")
    e("s_lshl_b32 s42, s62, 5")
    e("s_add_u32 s40, s40, s42")
    e("s_waitcnt vmcnt(0)")
    for tt in range(4):
        o = OWN + tt * 4
        for d in range(3):
            if BF:
                src = ACC + (d * 4 + (tt >> 1)) * 4 + (tt & 1) * 2
                for h in range(2):
                    e(f"v_lshlrev_b32 v{T1}, 16, v{src+h}")
                    e(f"v_and_b32 v{T2}, 0xffff0000, v{src+h}")
                    e(f"v_add_f32 v{o+2*h}, v{o+2*h}, v{T1}")
                    e(f"v_add_f32 v{o+2*h+1}, v{o+2*h+1}, v{T2}")
            else:
                for r in range(4): e(f"v_add_f32 v{o+r}, v{o+r}, v{ACC+(d*4+tt)*4+r}")
        e(f"v_cvt_pk_bf16_f32 v{o}, v{o}, v{o+1}")
        e(f"v_cvt_pk_bf16_f32 v{o+1}, v{o+2}, v{o+3}")
        e(f"s_add_u32 s42, s40, {tt*40960}")
        e(f"buffer_store_dwordx2 {vr(o,2)}, v{T0}, s[{SOUT}:{SOUT+3}], s42 offen{' sc1' if 'scOut' in OPT else ''}")
    if DIAG:
        e("s_waitcnt vmcnt(0)")
        A.stamp()
    A.label("L_fin")
    if DIAG:
        e("s_lshl_b32 s40, s2, 2")
        e("s_add_u32 s40, s40, s38")
        e("s_lshl_b32 s40, s40, 8")
        e("s_add_u32 s40, s40, 0x8000000")
        e(f"s_add_u32 s{SP}, s36, s40")
        e(f"s_addc_u32 s{SP+1}, s37, 0")
        e(f"s_mov_b32 s{SP+2}, 256")
        e(f"s_mov_b32 s{SP+3}, 0x00020000")
        e(f"v_lshrrev_b32 v{T0}, 2, v{VL16}")
        e(f"buffer_store_dword v135, v{T0}, s[{SP}:{SP+3}], 0 offen")
    A.label("L_done")
    e("s_endpgm")
    A.label("L_end")
    return A.text(), NV, NA

def main():
    body, nv, na = gen()
    out = []
    out.append("; @launch grid=(256,1,1) block=(512,1,1) lds=163840")
    out.append('.amdgcn_target "amdgcn-amd-amdhsa--gfx950"')
    out.append(".text")
    name = NAME + "_kernel"
    out.append(f".globl {name}\n.p2align 8\n.type {name},@function\n{name}:")
    out.append(body)
    out.append('.section .rodata,"a"\n.p2align 6')
    out.append(f""".amdhsa_kernel {name}
  .amdhsa_next_free_vgpr {nv + na}
  .amdhsa_next_free_sgpr 100
  .amdhsa_accum_offset {nv}
  .amdhsa_group_segment_fixed_size 0
  .amdhsa_kernarg_size 104
  .amdhsa_user_sgpr_count 2
  .amdhsa_user_sgpr_kernarg_segment_ptr 1
  .amdhsa_system_sgpr_workgroup_id_x 1
.end_amdhsa_kernel
""")
    path = sys.argv[1] if len(sys.argv) > 1 else f"cdna_kernels/{NAME}.s"
    open(path, "w").write("\n".join(out))
main()
```
